```python
import torch

def _softmax(x, axis=-1):
    return torch.softmax(x, dim=axis)
def _gelu(x):
    return torch.nn.functional.gelu(x, approximate="tanh")
def _silu(x):
    return torch.nn.functional.silu(x)
def _sigmoid(x):
    return torch.sigmoid(x)
def _layernorm(x, axis=-1, eps=1e-5):
    m = x.mean(dim=axis, keepdim=True)
    v = x.var(dim=axis, keepdim=True, unbiased=False)
    return (x - m) / torch.sqrt(v + eps)
def _scatter_add(tgt, idx, src, axis=0):
    return tgt.clone().index_add_(axis, idx, src)
def _segment_sum(src, seg, n):
    out = torch.zeros((n,) + src.shape[1:], dtype=src.dtype)
    return out.index_add_(0, seg, src)
def _pad(x, pw):
    flat = tuple(v for pair in reversed(pw) for v in pair)
    return torch.nn.functional.pad(x, flat)

kernel_name = 'parallel_sum__ssm_conv_s5__swiglu_ffn__prompt'

def setup_inputs():

    _w = (lambda a: (lambda t: t.to(torch.bfloat16) if t.is_floating_point() else t)(torch.as_tensor(a)))
    def _A_setup():
        B, S, D = 1, 2048, 576
        P = D
        Lambda_re = -0.5 * (lambda _x: torch.exp(torch.as_tensor(_x)))((lambda *s: torch.randn(*s, dtype=torch.bfloat16) * 0.8)(P))
        Lambda_im = (lambda *s: torch.randn(*s, dtype=torch.bfloat16) * 0.8)(P) * 1.0
        B_re = (lambda *s: torch.randn(*s, dtype=torch.bfloat16) * 0.8)(P, D) * (D ** -0.5)
        B_im = (lambda *s: torch.randn(*s, dtype=torch.bfloat16) * 0.8)(P, D) * (D ** -0.5)
        C_re = (lambda *s: torch.randn(*s, dtype=torch.bfloat16) * 0.8)(D, P) * (P ** -0.5)
        C_im = (lambda *s: torch.randn(*s, dtype=torch.bfloat16) * 0.8)(D, P) * (P ** -0.5)
        log_dt = (lambda *s: torch.randn(*s, dtype=torch.bfloat16) * 0.8)(P) * 0.3 - 2.0
        Dskip = (lambda *s: torch.randn(*s, dtype=torch.bfloat16) * 0.8)(D)
        return {
            "x": _w((lambda *s: torch.randn(*s, dtype=torch.bfloat16) * 0.05)(B, S, D)),
            "Lambda_re": _w(Lambda_re),
            "Lambda_im": _w(Lambda_im),
            "B_re": _w(B_re),
            "B_im": _w(B_im),
            "C_re": _w(C_re),
            "C_im": _w(C_im),
            "log_dt": _w(log_dt),
            "Dskip": _w(Dskip),
        }
    _A_in = _A_setup()

    def _B_setup():
        B, S, D, F = 1, 2048, 576, 4608
        return {
            "x": _w((lambda *s: torch.randn(*s, dtype=torch.bfloat16) * 0.05)(B, S, D)),
            "w_gate": _w((lambda *s: torch.randn(*s, dtype=torch.bfloat16) * 0.05)(D, F)),
            "w_up": _w((lambda *s: torch.randn(*s, dtype=torch.bfloat16) * 0.05)(D, F)),
            "w_down": _w((lambda *s: torch.randn(*s, dtype=torch.bfloat16) * 0.05)(F, D)),
        }
    _B_in = _B_setup()

    return {
        "A_x": _A_in["x"],
        "A_Lambda_re": _A_in["Lambda_re"],
        "A_Lambda_im": _A_in["Lambda_im"],
        "A_B_re": _A_in["B_re"],
        "A_B_im": _A_in["B_im"],
        "A_C_re": _A_in["C_re"],
        "A_C_im": _A_in["C_im"],
        "A_log_dt": _A_in["log_dt"],
        "A_Dskip": _A_in["Dskip"],
        "B_x": _B_in["x"],
        "B_w_gate": _B_in["w_gate"],
        "B_w_up": _B_in["w_up"],
        "B_w_down": _B_in["w_down"],
    }

def reference(A_x, A_Lambda_re, A_Lambda_im, A_B_re, A_B_im, A_C_re, A_C_im, A_log_dt, A_Dskip, B_x, B_w_gate, B_w_up, B_w_down):
    def _A_ref(x, Lambda_re, Lambda_im, B_re, B_im, C_re, C_im, log_dt, Dskip):
        Bsz, L, H = x.shape
        Lam = Lambda_re + 1j * Lambda_im
        Bmat = B_re + 1j * B_im
        Cmat = C_re + 1j * C_im
        dt = torch.exp(log_dt)
        Lam_bar = torch.exp(dt * Lam)
        B_bar = ((Lam_bar - 1.0) / Lam)[:, None] * Bmat
        Bu = torch.einsum("bld,pd->blp", x + 0j, B_bar)
        h = torch.zeros_like(Bu[:, 0, :])
        hs = []
        for t in range(L):
            h = Lam_bar[None, :] * h + Bu[:, t, :]
            hs.append(h)
        hseq = torch.stack(hs, 1)
        y = 2.0 * torch.einsum("blp,dp->bld", hseq, Cmat).real + x * Dskip[None, None, :]
        return y

    def _B_ref(x, w_gate, w_up, w_down):
        g = _silu(x @ w_gate)
        u = x @ w_up
        return (g * u) @ w_down

    x = A_x
    xn = _layernorm(x, axis=-1)
    return x + _A_ref(xn, A_Lambda_re, A_Lambda_im, A_B_re, A_B_im, A_C_re, A_C_im, A_log_dt, A_Dskip) + _B_ref(xn, B_w_gate, B_w_up, B_w_down)
```

```python
class Asm:
    def __init__(self):
        self.lines = []
        self.vmq = []
        self.lgq = []
        self.lbl = 0
    def __call__(self, s):
        self.lines.append("    " + s)
    def raw(self, s):
        self.lines.append(s)
    def label(self, name):
        self.lines.append(name + ":")
    def comment(self, s):
        self.lines.append("    ; " + s)
    def newlabel(self, p="L"):
        self.lbl += 1
        return f"{p}_{self.lbl}"
    def vm(self, s, tag):
        self(s); self.vmq.append(tag)
    def lg(self, s, tag):
        self(s); self.lgq.append(tag)
    def _need(self, q, tag):
        idx = [i for i, t in enumerate(q) if t == tag]
        if not idx:
            return None
        return len(q) - 1 - idx[-1]
    def wait(self, vm=None, lg=None):
        parts = []
        if vm is not None:
            n = self._need(self.vmq, vm)
            if n is not None:
                assert n <= 63
                parts.append(f"vmcnt({n})")
                self.vmq = self.vmq[len(self.vmq)-n:] if n else []
        if lg is not None:
            n = self._need(self.lgq, lg)
            if n is not None:
                assert n <= 15, n
                parts.append(f"lgkmcnt({n})")
                self.lgq = self.lgq[len(self.lgq)-n:] if n else []
        if parts:
            self("s_waitcnt " + " ".join(parts))
    def wait_all(self, vm=True, lg=True):
        parts = []
        if vm: parts.append("vmcnt(0)"); self.vmq = []
        if lg: parts.append("lgkmcnt(0)"); self.lgq = []
        self("s_waitcnt " + " ".join(parts))
    def text(self):
        return "\n".join(self.lines) + "\n"

def kernel_header(name):
    return f""".text
.globl {name}
.p2align 8
.type {name},@function
{name}:
"""

def kernel_desc(name, vgpr, accum, sgpr=102):
    return f""".section .rodata,"a"
.p2align 6
.amdhsa_kernel {name}
  .amdhsa_next_free_vgpr {vgpr}
  .amdhsa_next_free_sgpr {sgpr}
  .amdhsa_accum_offset {accum}
  .amdhsa_group_segment_fixed_size 0
  .amdhsa_kernarg_size 128
  .amdhsa_user_sgpr_count 2
  .amdhsa_user_sgpr_kernarg_segment_ptr 1
  .amdhsa_system_sgpr_workgroup_id_x 1
  .amdhsa_float_denorm_mode_32 3
.end_amdhsa_kernel
"""

XNF_OFF = 0x0000000
HF_OFF  = 0x0400000
CST_OFF = 0x2000000
GLR_OFF = 0x2200000
GLI_OFF = 0x2700000
AGG_OFF = 0x2C00000
PW_OFF  = 0x2D00000
PWI_OFF = 0x2D40000
COEF_OFF= 0x2E00000
PART_OFF= 0x3000000
WS_BYTES = 0x10000000

def srd(a, sbase, sptr, nbytes):
    a(f"s_mov_b32 s{sbase}, s{sptr}")
    a(f"s_and_b32 s{sbase+1}, s{sptr+1}, 0xffff")
    a(f"s_mov_b32 s{sbase+2}, {nbytes}")
    a(f"s_mov_b32 s{sbase+3}, 0x00020000")
```

```python
from common import *
import sys
SL_OFF = 0
SL_STR = 592
CF_OFF = SL_OFF + 64*SL_STR
XL_OFF = CF_OFF + 1024
K0_LDS = XL_OFF + 73728
LOG2E = 0x3fb8aa3b
INV2PI = 0x3e22f983

def gen_k0(name="k0_kernel", stamps=False):
    a = Asm()
    def stamp(n):
        if stamps:
            a(f"s_memrealtime s[{70+2*n}:{71+2*n}]")
    a.raw(kernel_header(name))
    a("s_cmp_ge_u32 s2, 256")
    a("s_cbranch_scc1 K0_done")
    stamp(0)
    a("s_load_dwordx16 s[36:51], s[0:1], 0")
    a("s_load_dwordx2 s[8:9], s[0:1], 120")
    a("v_lshrrev_b32 v1, 6, v0")
    a("v_mov_b32 v7, v0")
    a("v_and_b32 v0, 63, v0")
    a("v_readfirstlane_b32 s20, v1")
    a("s_lshr_b32 s21, s2, 3")
    a("s_and_b32 s22, s2, 7")
    a("v_lshrrev_b32 v2, 4, v0")
    a("v_and_b32 v3, 15, v0")
    a("v_mul_u32_u24 v4, 1152, v2")
    a("v_lshl_add_u32 v4, v3, 3, v4")
    a("s_lshl_b32 s23, s21, 6")
    a("s_lshl_b32 s24, s20, 2")
    a("s_add_u32 s23, s23, s24")
    a("s_mulk_i32 s23, 1152")
    a("s_waitcnt lgkmcnt(0)")
    srd(a, 12, 36, 2048*576*2)
    srd(a, 16, 8, WS_BYTES)
    for i in range(9):
        a(f"buffer_load_dwordx2 v[{8+2*i}:{9+2*i}], v4, s[12:15], s23 offen offset:{i*128}")
    a("s_cmp_gt_u32 s20, 8")
    a("s_cbranch_scc1 K0_noB")
    a("v_mov_b32 v26, s42")
    a("v_mov_b32 v27, s43")
    a("v_mov_b32 v28, s44")
    a("v_mov_b32 v29, s45")
    a("v_cmp_gt_u32 vcc, 8, v3")
    a("s_mul_i32 s24, s22, 72")
    a("s_lshl_b32 s25, s20, 3")
    a("s_add_u32 s24, s24, s25")
    a("v_cndmask_b32 v26, v28, v26, vcc")
    a("v_cndmask_b32 v27, v29, v27, vcc")
    a("v_and_b32 v28, 7, v3")
    a("v_add_u32 v28, s24, v28")
    a("v_mul_u32_u24 v28, 1152, v28")
    a("v_lshl_add_u32 v28, v2, 4, v28")
    a("v_add_co_u32 v26, vcc, v26, v28")
    a("s_nop 1")
    a("v_addc_co_u32 v27, vcc, 0, v27, vcc")
    for ks in range(18):
        a(f"global_load_dwordx4 v[{48+4*ks}:{51+4*ks}], v[26:27], off offset:{ks*64}")
    a("s_waitcnt vmcnt(18)")
    a("s_branch K0_ln")
    a.label("K0_noB")
    a("s_waitcnt vmcnt(0)")
    a.label("K0_ln")
    stamp(1)
    a("v_mov_b32 v30, 0x3f803f80")
    a("v_mov_b32 v26, 0")
    a("v_mov_b32 v27, 0")
    for i in range(18):
        d = 26 + (i & 1)
        a(f"v_dot2_f32_bf16 v{d}, v{8+i}, v30, v{d}")
    a("s_nop 2")
    a("v_add_f32 v26, v26, v27")
    def red(v):
        for sh in (8, 4, 2, 1):
            a("s_nop 1")
            a(f"v_add_f32_dpp v{v}, v{v}, v{v} row_ror:{sh} row_mask:0xf bank_mask:0xf")
    red(26)
    a("v_mul_f32 v26, 0x3ae38e39, v26")
    a("v_mov_b32 v27, 0")
    a("v_mov_b32 v28, 0")
    for i in range(18):
        a(f"v_lshlrev_b32 v120, 16, v{8+i}")
        a(f"v_and_b32 v121, 0xffff0000, v{8+i}")
        a("v_sub_f32 v120, v120, v26")
        a("v_sub_f32 v121, v121, v26")
        a("v_fmac_f32 v27, v120, v120")
        a("v_fmac_f32 v28, v121, v121")
    a("v_add_f32 v27, v27, v28")
    red(27)
    a("v_mul_f32 v27, 0x3ae38e39, v27")
    a("v_cvt_pk_bf16_f32 v26, 0, v26")
    a("v_cvt_pk_bf16_f32 v27, 0, v27")
    a("v_add_f32 v27, 0x3727c5ac, v27")
    a("v_cvt_pk_bf16_f32 v27, 0, v27")
    a("v_sqrt_f32 v27, v27")
    a("s_nop 0")
    a("v_cvt_pk_bf16_f32 v27, 0, v27")
    a("v_rcp_f32 v27, v27")
    a("v_lshrrev_b32 v28, 3, v3")
    a("v_lshlrev_b32 v29, 11, v28")
    a("v_bfe_u32 v28, v3, 1, 2")
    a("v_lshl_add_u32 v29, v28, 8, v29")
    a("v_and_b32 v28, 1, v3")
    a("v_lshl_add_u32 v29, v28, 3, v29")
    a("v_lshl_add_u32 v29, v2, 4, v29")
    a("s_lshr_b32 s24, s20, 3")
    a("s_mul_i32 s24, s24, 36864")
    a("s_bfe_u32 s25, s20, 0x10002")
    a("s_lshl_b32 s25, s25, 10")
    a("s_add_u32 s24, s24, s25")
    a("s_and_b32 s25, s20, 3")
    a("s_lshl_b32 s25, s25, 6")
    a("s_add_u32 s24, s24, s25")
    a(f"s_add_u32 s24, s24, {XL_OFF}")
    a("v_add_u32 v29, s24, v29")
    for i in range(18):
        t = 120 + 2*(i & 3)
        a(f"v_lshlrev_b32 v{t}, 16, v{8+i}")
        a(f"v_and_b32 v{t+1}, 0xffff0000, v{8+i}")
        a(f"v_sub_f32 v{t}, v{t}, v26")
        a(f"v_sub_f32 v{t+1}, v{t+1}, v26")
        a(f"v_cvt_pk_bf16_f32 v{t}, 0, v{t}")
        a(f"v_cvt_pk_bf16_f32 v{t+1}, 0, v{t+1}")
        a(f"v_mul_f32 v{t}, v{t}, v27")
        a(f"v_mul_f32 v{t+1}, v{t+1}, v27")
        a(f"v_cvt_pk_bf16_f32 v{8+i}, v{t}, v{t+1}")
        if i & 1:
            a(f"ds_write_b64 v29, v[{8+i-1}:{8+i}] offset:{(i//2)*4096}")
    a("s_waitcnt lgkmcnt(0)")
    stamp(2)
    a("s_barrier")
    stamp(3)
    a("s_cmp_gt_u32 s20, 8")
    a("s_cbranch_scc1 K0_roleB")
    a("v_lshlrev_b32 v4, 4, v0")
    a(f"v_add_u32 v4, {XL_OFF}, v4")
    a("v_add_u32 v5, 36864, v4")
    slots = [[8, 12, 16, 20], [24, 28, 120, 124]]
    def rd(ks):
        for mi in range(4):
            rb, isub = divmod(mi, 2)
            r = slots[ks & 1][mi]
            a.lg(f"ds_read_b128 v[{r}:{r+3}], v{4+rb} offset:{ks*2048 + isub*1024}", f"A{ks}")
    rd(0)
    for ks in range(18):
        if ks+1 < 18: rd(ks+1)
        a(f"s_waitcnt vmcnt({17-ks})")
        a.wait(lg=f"A{ks}")
        for mi in range(4):
            r = slots[ks & 1][mi]
            c = "0" if ks == 0 else f"v[{32+4*mi}:{35+4*mi}]"
            a(f"v_mfma_f32_16x16x32_bf16 v[{32+4*mi}:{35+4*mi}], v[{48+4*ks}:{51+4*ks}], v[{r}:{r+3}], {c}")
    a(f"v_mul_u32_u24 v4, {SL_STR}, v3")
    a("v_lshl_add_u32 v4, v2, 4, v4")
    a("s_lshl_b32 s24, s20, 6")
    a(f"s_add_u32 s24, s24, {SL_OFF}")
    a("v_add_u32 v4, s24, v4")
    a("s_nop 7")
    for mi in range(4):
        a(f"ds_write_b128 v4, v[{32+4*mi}:{35+4*mi}] offset:{mi*16*SL_STR}")
    a("s_branch K0_b2")
    a.label("K0_roleB")
    a("s_cmp_gt_u32 s20, 10")
    a("s_cbranch_scc1 K0_roleC")
    a("s_sub_u32 s24, s20, 9")
    a("s_lshl_b32 s24, s24, 6")
    a("v_add_u32 v4, s24, v0")
    a("v_cmp_gt_u32 vcc, 72, v4")
    a("s_and_saveexec_b64 s[52:53], vcc")
    a("s_mul_i32 s25, s22, 72")
    a("v_add_u32 v5, s25, v4")
    a("v_lshlrev_b32 v6, 1, v5")
    a("global_load_ushort v8, v6, s[38:39]")
    a("global_load_ushort v9, v6, s[40:41]")
    a("global_load_ushort v10, v6, s[50:51]")
    a("s_waitcnt vmcnt(0)")
    a("v_lshlrev_b32 v8, 16, v8")
    a("v_lshlrev_b32 v9, 16, v9")
    a("v_lshlrev_b32 v10, 16, v10")
    a(f"v_mul_f32 v10, {LOG2E}, v10")
    a("v_exp_f32 v10, v10")
    a("s_nop 0")
    a("v_cvt_pk_bf16_f32 v10, 0, v10")
    a("v_mul_f32 v11, v10, v8")
    a("v_mul_f32 v12, v10, v9")
    def cexp(nsrc, dre, dim):
        a(f"v_mul_f32 v20, {nsrc}, v11")
        a(f"v_mul_f32 v21, {nsrc}, v12")
        a(f"v_mul_f32 v20, {LOG2E}, v20")
        a(f"v_mul_f32 v21, {INV2PI}, v21")
        a("v_exp_f32 v20, v20")
        a("v_fract_f32 v21, v21")
        a("s_nop 0")
        a("v_cos_f32 v22, v21")
        a("v_sin_f32 v23, v21")
        a("s_nop 0")
        a(f"v_mul_f32 v{dre}, v20, v22")
        a(f"v_mul_f32 v{dim}, v20, v23")
    cexp("1.0", 14, 15)
    a("v_add_f32 v16, -1.0, v14")
    a("v_mul_f32 v17, v8, v8")
    a("v_fmac_f32 v17, v9, v9")
    a("v_rcp_f32 v18, v17")
    a("v_mul_f32 v24, v16, v8")
    a("v_fmac_f32 v24, v15, v9")
    a("v_mul_f32 v25, v15, v8")
    a("v_fma_f32 v25, -v16, v9, v25")
    a("v_fma_f32 v19, -v17, v18, 1.0")
    a("v_fmac_f32 v18, v19, v18")
    a("v_add_f32 v18, v18, v18")
    a("v_mul_f32 v24, v24, v18")
    a("v_mul_f32 v25, v25, v18")
    a("v_lshlrev_b32 v26, 3, v4")
    a(f"ds_write_b64 v26, v[24:25] offset:{CF_OFF}")
    a("v_lshlrev_b32 v27, 2, v5")
    for jj in range(2):
        a("s_lshl_b32 s26, s21, 1")
        a(f"s_add_u32 s26, s26, {jj+1}")
        a("v_cvt_f32_u32 v28, s26")
        cexp("v28", 30, 31)
        a("s_sub_u32 s26, s26, 1")
        a("s_mulk_i32 s26, 2304")
        a(f"s_add_u32 s27, s26, {PW_OFF}")
        a(f"s_add_u32 s28, s26, {PWI_OFF}")
        a("buffer_store_dword v30, v27, s[16:19], s27 offen")
        a("buffer_store_dword v31, v27, s[16:19], s28 offen")
        a("s_nop 1")
    a("s_mov_b64 exec, s[52:53]")
    a("s_branch K0_b2")
    a.label("K0_roleC")
    a("s_cmp_gt_u32 s20, 11")
    a("s_cbranch_scc1 K0_roleD")
    a("s_mul_i32 s24, s22, 9216")
    a("v_lshlrev_b32 v4, 4, v0")
    a("v_add_u32 v5, s24, v4")
    a(f"v_add_u32 v5, {XL_OFF}, v5")
    a("s_mul_i32 s25, s21, 73728")
    a("s_add_u32 s25, s25, s24")
    if XNF_OFF: a(f"s_add_u32 s25, s25, {XNF_OFF}")
    a("s_add_u32 s26, s25, 4096")
    a("s_add_u32 s27, s25, 8192")
    for q in range(9):
        a(f"ds_read_b128 v[{32+4*q}:{35+4*q}], v5 offset:{q*1024}")
    for q in range(9):
        a(f"s_waitcnt lgkmcnt({8-q})")
        a(f"buffer_store_dwordx4 v[{32+4*q}:{35+4*q}], v4, s[16:19], s{25+q//4} offen offset:{(q%4)*1024}")
    a("s_branch K0_b2")
    a.label("K0_roleD")
    srd(a, 52, 46, 576*576*2)
    srd(a, 56, 48, 576*576*2)
    a("s_movk_i32 s29, 4608")
    for rnd in range(2):
        a("s_sub_u32 s24, s20, 12")
        a("s_lshl_b32 s24, s24, 6")
        a(f"s_add_u32 s24, s24, {rnd*256}")
        a("v_add_u32 v4, s24, v0")
        a("v_cmp_gt_u32 vcc, 324, v4")
        a("s_and_saveexec_b64 s[60:61], vcc")
        a(f"s_cbranch_execz K0_dskip{rnd}")
        a("s_mul_i32 s25, s2, 324")
        a("v_add_u32 v4, s25, v4")
        a("s_mov_b32 s26, 7456541")
        a("v_mul_hi_u32 v5, v4, s26")
        a("v_mul_u32_u24 v6, 576, v5")
        a("v_sub_u32 v6, v4, v6")
        a("v_cmp_le_u32 vcc, 72, v5")
        a("v_subrev_u32 v8, 72, v5")
        a("s_nop 1")
        a("v_cndmask_b32 v8, v5, v8, vcc")
        a("v_mul_u32_u24 v9, 9216, v8")
        a("v_lshl_add_u32 v9, v6, 1, v9")
        a("s_and_saveexec_b64 s[62:63], vcc")
        a(f"s_cbranch_execz K0_dre{rnd}")
        for e in range(8):
            a(f"buffer_load_ushort v{16+e}, v9, s[56:59], {'0' if e < 4 else 's29'} offen offset:{(e%4)*1152}")
        a("s_waitcnt vmcnt(0)")
        for e in range(8):
            a(f"v_xor_b32 v{16+e}, 0x8000, v{16+e}")
        a.label(f"K0_dre{rnd}")
        a("s_andn2_b64 exec, s[62:63], exec")
        a(f"s_cbranch_execz K0_dst{rnd}")
        for e in range(8):
            a(f"buffer_load_ushort v{16+e}, v9, s[52:55], {'0' if e < 4 else 's29'} offen offset:{(e%4)*1152}")
        a("s_waitcnt vmcnt(0)")
        a.label(f"K0_dst{rnd}")
        a("s_mov_b64 exec, s[62:63]")
        for r in range(4):
            a(f"v_lshl_or_b32 v{12+r}, v{17+2*r}, 16, v{16+2*r}")
        a("v_add_u32 v10, 576, v6")
        a("v_cndmask_b32 v10, v6, v10, vcc")
        a("v_mul_u32_u24 v10, 1152, v10")
        a("v_lshl_add_u32 v10, v8, 4, v10")
        a(f"s_mov_b32 s27, {CST_OFF}")
        a("buffer_store_dwordx4 v[12:15], v10, s[16:19], s27 offen")
        a.label(f"K0_dskip{rnd}")
        a("s_mov_b64 exec, s[60:61]")
        a("s_nop 1")
    a.label("K0_b2")
    a("s_waitcnt lgkmcnt(0)")
    stamp(4)
    a("s_barrier")
    stamp(5)
    a("v_cmp_gt_u32 vcc, 1008, v7")
    a("s_and_saveexec_b64 s[60:61], vcc")
    a("s_cbranch_execz K0_b3")
    a("v_mul_u32_u24 v32, 911, v7")
    a("v_lshrrev_b32 v32, 16, v32")
    a("v_mul_u32_u24 v33, 72, v32")
    a("v_sub_u32 v33, v7, v33")
    a("v_lshlrev_b32 v34, 3, v33")
    a(f"ds_read_b64 v[36:37], v34 offset:{CF_OFF}")
    a("v_lshrrev_b32 v34, 3, v33")
    a("v_lshlrev_b32 v34, 6, v34")
    a("v_and_b32 v35, 7, v33")
    a("v_lshl_add_u32 v34, v35, 2, v34")
    a(f"v_mul_u32_u24 v35, {SL_STR}, v32")
    a("v_add_u32 v34, v34, v35")
    for it in range(5):
        if it == 4:
            a("v_cmp_gt_u32 vcc, 8, v32")
            a("s_and_saveexec_b64 s[62:63], vcc")
        a(f"ds_read_b32 v{40+2*it}, v34 offset:{SL_OFF + it*14*SL_STR}")
        a(f"ds_read_b32 v{41+2*it}, v34 offset:{SL_OFF + it*14*SL_STR + 32}")
        if it == 4:
            a("s_mov_b64 exec, s[62:63]")
    a("s_waitcnt lgkmcnt(0)")
    for it in range(5):
        re, im = 40+2*it, 41+2*it
        a(f"v_mul_f32 v50, v36, v{re}")
        a(f"v_mul_f32 v51, v36, v{im}")
        a(f"v_fma_f32 v50, -v37, v{im}, v50")
        a(f"v_fmac_f32 v51, v37, v{re}")
        if it == 4:
            a("v_cmp_gt_u32 vcc, 8, v32")
            a("s_and_saveexec_b64 s[62:63], vcc")
        a(f"ds_write_b32 v34, v50 offset:{SL_OFF + it*14*SL_STR}")
        a(f"ds_write_b32 v34, v51 offset:{SL_OFF + it*14*SL_STR + 32}")
        if it == 4:
            a("s_mov_b64 exec, s[62:63]")
    a.label("K0_b3")
    a("s_mov_b64 exec, s[60:61]")
    a("s_waitcnt lgkmcnt(0)")
    a("s_barrier")
    stamp(6)
    a("s_sub_u32 s24, s20, 9")
    a("s_cmp_gt_u32 s24, 1")
    a("s_cbranch_scc1 K0_end")
    a("v_cmp_gt_u32 vcc, 72, v4")
    a("s_and_saveexec_b64 s[52:53], vcc")
    a("v_lshrrev_b32 v32, 3, v4")
    a("v_lshlrev_b32 v32, 6, v32")
    a("v_and_b32 v33, 7, v4")
    a("v_lshl_add_u32 v32, v33, 2, v32")
    a("v_lshlrev_b32 v33, 2, v4")
    a(f"s_mul_i32 s25, s21, {64*2304}")
    a("s_mul_i32 s26, s22, 288")
    a("s_add_u32 s25, s25, s26")
    a(f"s_add_u32 s26, s25, {GLI_OFF}")
    a(f"s_add_u32 s25, s25, {GLR_OFF}")
    a("v_mov_b32 v34, 0")
    a("v_mov_b32 v35, 0")
    PF = 6
    def srd_(t):
        r = 40 + 2*(t % 8)
        a.lg(f"ds_read_b32 v{r}, v32 offset:{SL_OFF + t*SL_STR}", f"S{t}")
        a.lg(f"ds_read_b32 v{r+1}, v32 offset:{SL_OFF + t*SL_STR + 32}", f"S{t}")
    for t in range(PF): srd_(t)
    hr, hi = 34, 35
    for t in range(64):
        if t+PF < 64: srd_(t+PF)
        a.wait(lg=f"S{t}")
        r = 40 + 2*(t % 8)
        nr, ni = (36, 37) if hr == 34 else (34, 35)
        if (t // 2) % 2 == 1 and False: pass
        a(f"v_fma_f32 v{nr}, -v15, v{hi}, v{r}")
        a(f"v_fma_f32 v{ni}, v15, v{hr}, v{r+1}")
        a(f"v_fmac_f32 v{nr}, v14, v{hr}")
        a(f"v_fmac_f32 v{ni}, v14, v{hi}")
        hr, hi = nr, ni
        a(f"buffer_store_dword v{hr}, v33, s[16:19], s25 offen")
        a(f"buffer_store_dword v{hi}, v33, s[16:19], s26 offen")
        a("s_add_u32 s25, s25, 2304")
        a("s_add_u32 s26, s26, 2304")
    a("v_lshlrev_b32 v33, 3, v5")
    a(f"s_mul_i32 s25, s21, {576*8}")
    a(f"s_add_u32 s25, s25, {AGG_OFF}")
    a(f"buffer_store_dwordx2 v[{hr}:{hi}], v33, s[16:19], s25 offen")
    a.label("K0_end")
    stamp(7)
    a("s_waitcnt vmcnt(0)")
    stamp(8)
    if stamps:
        a("s_mov_b64 exec, -1")
        a("s_waitcnt lgkmcnt(0)")
        for n in range(1, 9):
            a(f"s_sub_u32 s{54+n}, s{70+2*n}, s70")
            a(f"v_mov_b32 v{16+n}, s{54+n}")
        a("v_mov_b32 v16, s70")
        a("s_lshl_b32 s30, s2, 4")
        a("s_add_u32 s30, s30, s20")
        a("s_lshl_b32 s30, s30, 6")
        a("s_add_u32 s30, s30, 0xF000000")
        a("v_mov_b32 v30, 0")
        a("buffer_store_dwordx4 v[16:19], v30, s[16:19], s30 offen")
        a("buffer_store_dwordx4 v[20:23], v30, s[16:19], s30 offen offset:16")
        a("buffer_store_dword v24, v30, s[16:19], s30 offen offset:32")
        a("s_waitcnt vmcnt(0)")
    a.label("K0_done")
    a("s_endpgm")
    return a.text(), kernel_desc(name, 128, 128)

if __name__ == "__main__":
    body, desc = gen_k0(stamps=("stamps" in sys.argv))
    hdr = f"; @launch kernel=k0_kernel grid=(256,1,1) block=(1024,1,1) lds={K0_LDS}\n.amdgcn_target \"amdgcn-amd-amdhsa--gfx950\"\n"
    open("k0.s", "w").write(hdr + body + desc)
```

```python
from common import *
import sys
ACC = 16
TMP = 160
NARCH = 176
XR = 0
WR = 24
NACC = 80
FIN_LDS = 147456
NS = 4
STG = 36864
def acc_reg(i, j, m):
    return ACC + ((j*2 + i)*2 + m)*4
def rng(t, b, n=4):
    return f"{t}[{b}:{b+n-1}]"

def gen_k1(name="k1_kernel", finalize=None, stamps=False, nolds=False, nomem=False):
    a = Asm()
    def stamp(n):
        if stamps:
            a(f"s_memtime s[{40+2*n}:{41+2*n}]")
            a(f"s_memrealtime s[{80+2*n}:{81+2*n}]")
    a.raw(kernel_header(name))
    a("s_cmp_ge_u32 s2, 256")
    a("s_cbranch_scc1 K1_done")
    stamp(0)
    if stamps: a("s_memrealtime s[60:61]")
    a("s_load_dwordx2 s[4:5], s[0:1], 80")
    a("s_load_dwordx2 s[6:7], s[0:1], 88")
    a("s_load_dwordx2 s[8:9], s[0:1], 120")
    a("v_lshrrev_b32 v15, 6, v0")
    a("v_and_b32 v0, 63, v0")
    a("v_readfirstlane_b32 s20, v15")
    a("v_lshlrev_b32 v1, 4, v0")
    a("s_and_b32 s21, s2, 7")
    a("s_lshr_b32 s22, s2, 3")
    a("s_and_b32 s23, s22, 3")
    a("s_lshl_b32 s21, s21, 2")
    a("s_add_u32 s21, s21, s23")
    a("s_lshr_b32 s22, s22, 2")
    a("s_and_b32 s23, s20, 3")
    a("s_lshl_b32 s23, s23, 4")
    a("s_mul_i32 s24, s21, 288")
    a("s_movk_i32 s25, 3641")
    a("s_movk_i32 s26, 9216")
    a("s_mul_i32 s27, s20, 4608")
    a("s_lshl_b32 s28, s22, 3")
    a("s_add_u32 s28, s28, s20")
    a(f"s_mul_i32 s28, s28, {18*2048}")
    if XNF_OFF: a(f"s_add_u32 s28, s28, {XNF_OFF}")
    T = TMP
    for q in range(5):
        d = 2+q
        if q: a(f"v_add_u32 v{T}, {q*64}, v0")
        else: a(f"v_mov_b32 v{T}, v0")
        a(f"v_mul_lo_u32 v{T+1}, v{T}, s25")
        a(f"v_lshrrev_b32 v{T+1}, 16, v{T+1}")
        a(f"v_mul_u32_u24 v{T+2}, 18, v{T+1}")
        a(f"v_sub_u32 v{T+2}, v{T}, v{T+2}")
        a(f"v_add_u32 v{T+1}, s23, v{T+1}")
        a(f"v_and_b32 v{T+3}, 0x23, v{T+1}")
        a(f"v_bfe_u32 v{T+4}, v{T+1}, 2, 2")
        a(f"v_lshl_add_u32 v{T+3}, v{T+4}, 3, v{T+3}")
        a(f"v_bfe_u32 v{T+4}, v{T+1}, 4, 1")
        a(f"v_lshl_add_u32 v{T+3}, v{T+4}, 2, v{T+3}")
        a(f"v_mul_lo_u32 v{T+3}, v{T+3}, s26")
        a(f"v_lshl_add_u32 v{T+3}, v{T+2}, 4, v{T+3}")
        a(f"v_add_u32 v{d}, s24, v{T+3}")
    a("s_waitcnt lgkmcnt(0)")
    a("s_cmp_lt_u32 s20, 4")
    a("s_cselect_b32 s12, s4, s6")
    a("s_cselect_b32 s13, s5, s7")
    a("s_and_b32 s13, s13, 0xffff")
    a(f"s_mov_b32 s14, {576*4608*2}")
    a("s_mov_b32 s15, 0x00020000")
    srd(a, 16, 8, WS_BYTES)

    def dma(stage, q):
        b = stage % NS
        a(f"s_add_u32 m0, s27, {b*STG + q*1024}")
        a(f"s_mov_b32 s30, {stage*64*9216}")
        if q == 4: a("s_mov_b32 exec_hi, 0")
        a.vm(f"buffer_load_dwordx4 v{2+q}, s[12:15], s30 offen lds", f"D{stage}")
        if q == 4: a("s_mov_b32 exec_hi, -1")
    def xload(ks, i):
        slot = ks % 3
        if i == 0:
            a(f"s_add_u32 s31, s28, {ks*2048}")
        a.vm(f"buffer_load_dwordx4 {rng('a', XR + slot*8 + i*4)}, v1, s[16:19], s31 offen offset:{i*1024}", f"X{ks}")
    def wread(sig, part):
        ks, j = divmod(sig, 9)
        stage, sub = divmod(ks, 2)
        b = stage % NS
        m, half = divmod(part, 2)
        off = m*18432 + sub*9216 + half*4608 + j*32
        dst = WR + (sig % 4)*8 + m*4 + half*2
        a.lg(f"ds_read_b64_tr_b16 {rng('a', dst, 2)}, v{11+b} offset:{off}", f"W{sig}")

    def stepA(a):
        saved = list(a.vmq)
        a("s_cmp_gt_u32 s20, 4")
        a("s_cbranch_scc1 K1_A_end")
        a("s_lshl_b32 s36, s20, 6")
        a(f"v_add_u32 v{T}, s36, v0")
        a(f"v_cmp_gt_u32 vcc, 288, v{T}")
        a("s_and_saveexec_b64 s[38:39], vcc")
        a("s_and_b32 s36, s2, 1")
        a("s_mul_i32 s36, s36, 288")
        a(f"v_add_u32 v{T+1}, s36, v{T}")
        a(f"v_lshlrev_b32 v{T+2}, 2, v{T+1}")
        a(f"v_lshlrev_b32 v{T+3}, 3, v{T+1}")
        a("s_lshr_b32 s37, s2, 3")
        a(f"s_mov_b32 s40, {PW_OFF + 63*2304}")
        a(f"s_mov_b32 s41, {PWI_OFF + 63*2304}")
        a(f"buffer_load_dword v{T+4}, v{T+2}, s[16:19], s40 offen")
        a(f"buffer_load_dword v{T+5}, v{T+2}, s[16:19], s41 offen")
        a(f"s_mov_b32 s40, {AGG_OFF}")
        for c in range(31):
            a(f"s_cmp_le_u32 s37, {c}")
            a("s_cbranch_scc1 K1_A_ld")
            a(f"buffer_load_dwordx2 v[{ACC+2*c}:{ACC+2*c+1}], v{T+3}, s[16:19], s40 offen")
            a("s_add_u32 s40, s40, 4608")
        a.label("K1_A_ld")
        a(f"v_mov_b32 v{T+6}, 0")
        a(f"v_mov_b32 v{T+7}, 0")
        a("s_waitcnt vmcnt(0)")
        hr, hi = T+6, T+7
        for c in range(31):
            a(f"s_cmp_le_u32 s37, {c}")
            a(f"s_cbranch_scc1 K1_A_st{c&1}")
            nr, ni = (T+8, T+9) if hr == T+6 else (T+6, T+7)
            a(f"v_fma_f32 v{nr}, -v{T+5}, v{hi}, v{ACC+2*c}")
            a(f"v_fma_f32 v{ni}, v{T+5}, v{hr}, v{ACC+2*c+1}")
            a(f"v_fmac_f32 v{nr}, v{T+4}, v{hr}")
            a(f"v_fmac_f32 v{ni}, v{T+4}, v{hi}")
            hr, hi = nr, ni
        a.label("K1_A_st1")
        a(f"v_mov_b32 v{T+6}, v{T+8}")
        a(f"v_mov_b32 v{T+7}, v{T+9}")
        a.label("K1_A_st0")
        a(f"v_lshlrev_b32 v{T}, 2, v{T}")
        a(f"v_add_u32 v{T}, {FIN_LDS}, v{T}")
        a(f"ds_write_b32 v{T}, v{T+6}")
        a(f"ds_write_b32 v{T}, v{T+7} offset:1152")
        a("s_waitcnt lgkmcnt(0)")
        a("s_mov_b64 exec, s[38:39]")
        a.label("K1_A_end")
        a.vmq = saved
    def stepB_addr(a):
        a(f"v_and_b32 v{T}, 15, v0")
        a(f"v_lshrrev_b32 v{T+1}, 4, v0")
        a(f"v_mul_u32_u24 v7, 2304, v{T}")
        a(f"v_lshl_add_u32 v7, v{T+1}, 4, v7")
        a(f"v_lshlrev_b32 v8, 4, v{T+1}")
        a(f"v_add_u32 v8, {FIN_LDS}, v8")
        a("s_lshr_b32 s36, s2, 1")
        a("s_and_b32 s37, s2, 1")
        a("s_mul_i32 s37, s37, 1152")
        a(f"s_mul_i32 s38, s36, {16*2304}")
        a("s_add_u32 s38, s38, s37")
        a("s_and_b32 s39, s36, 3")
        a(f"s_mul_i32 s39, s39, {16*2304}")
        a("s_add_u32 s39, s39, s37")
    def stepB_load(a, sitem, abase, tag):
        a(f"s_add_u32 s40, s38, {sitem}")
        a(f"s_add_u32 s41, s40, {GLI_OFF}")
        a(f"s_add_u32 s40, s40, {GLR_OFF}")
        a(f"s_add_u32 s42, s39, {sitem}")
        a(f"s_add_u32 s43, s42, {PWI_OFF}")
        a(f"s_add_u32 s42, s42, {PW_OFF}")
        for n, so in enumerate(("s40", "s41", "s42", "s43")):
            for h in range(2):
                r = abase + n*8 + h*4
                a.vm(f"buffer_load_dwordx4 a[{r}:{r+3}], v7, s[16:19], {so} offen offset:{h*64}", tag)
    def stepB_math(a, sitem, abase, R):
        a(f"v_add_u32 v{T}, {sitem}, v8")
        for h in range(2):
            a(f"ds_read_b128 v[{R+32+h*4}:{R+35+h*4}], v{T} offset:{h*64}")
            a(f"ds_read_b128 v[{R+40+h*4}:{R+43+h*4}], v{T} offset:{1152+h*64}")
        for k in range(32):
            a(f"v_accvgpr_read_b32 v{R+k}, a{abase+k}")
        a("s_waitcnt lgkmcnt(0)")
        for e in range(8):
            gr, gi, pr, pi, cr, ci = R+e, R+8+e, R+16+e, R+24+e, R+32+e, R+40+e
            a(f"v_fmac_f32 v{gr}, v{pr}, v{cr}")
            a(f"v_fmac_f32 v{gi}, v{pr}, v{ci}")
            a(f"v_fma_f32 v{gr}, -v{pi}, v{ci}, v{gr}")
            a(f"v_fmac_f32 v{gi}, v{pi}, v{cr}")
        for q in range(4):
            a(f"v_cvt_pk_bf16_f32 v{R+16+q}, v{R+2*q}, v{R+2*q+1}")
            a(f"v_cvt_pk_bf16_f32 v{R+20+q}, v{R+8+2*q}, v{R+8+2*q+1}")
        a("s_lshr_b32 s40, s2, 2")
        a("s_mul_i32 s40, s40, 180")
        a("s_and_b32 s41, s2, 1")
        a("s_mul_i32 s41, s41, 9")
        a("s_add_u32 s40, s40, s41")
        a("s_add_u32 s40, s40, 144")
        a("s_lshl_b32 s40, s40, 11")
        a(f"s_lshl_b32 s41, {sitem}, 4")
        a("s_add_u32 s40, s40, s41")
        a("s_bfe_u32 s41, s2, 0x10001")
        a("s_lshl_b32 s41, s41, 10")
        a("s_add_u32 s40, s40, s41")
        a(f"s_add_u32 s40, s40, {HF_OFF}")
        a(f"s_add_u32 s41, s40, {18*2048}")
        a.vm(f"buffer_store_dwordx4 v[{R+16}:{R+19}], v1, s[16:19], s40 offen", "S")
        a.vm(f"buffer_store_dwordx4 v[{R+20}:{R+23}], v1, s[16:19], s41 offen", "S")
    for q in range(5): dma(0, q)
    for i in range(2): xload(0, i)
    for q in range(5): dma(1, q)
    for i in range(2): xload(1, i)
    a(f"v_lshrrev_b32 v{T}, 2, v0")
    a(f"v_mul_u32_u24 v{T}, 288, v{T}")
    a(f"v_and_b32 v{T+1}, 3, v0")
    a(f"v_lshl_add_u32 v11, v{T+1}, 3, v{T}")
    for b in range(1, NS):
        a(f"v_add_u32 v{11+b}, {b*STG}, v11")
    if finalize:
        stepA(a)
    a.wait(vm="D0")
    a("s_barrier")
    stamp(1)
    for sig in (0, 1):
        for p in range(4): wread(sig, p)
    pend_dma = [(2, q) for q in range(5)]
    for sig in range(162):
        ks, j = divmod(sig, 9)
        fill = []
        if (sig+2) % 18 == 0 and sig+2 < 162:
            s1 = (sig+2)//18
            a.wait(vm=f"D{s1}")
            a("s_barrier")
            if s1+2 <= 8:
                pend_dma = [(s1+2, q) for q in range(5)]
        if sig+2 < 162 and not (nolds and sig+2 >= 4):
            for p in range(4):
                fill.append(lambda p=p: wread(sig+2, p))
        if j == 0 and ks+2 < 18 and not (nomem and ks+2 >= 3):
            for i in range(2):
                fill.append(lambda i=i: xload(ks+2, i))
        elif pend_dma and not nomem:
            st, q = pend_dma.pop(0)
            fill.append(lambda st=st, q=q: dma(st, q))
        if j == 0:
            a.wait(vm=f"X{ks}", lg=f"W{sig}")
        else:
            a.wait(lg=f"W{sig}")
        slot = ks % 3
        for i in range(2):
            for m in range(2):
                r = acc_reg(i, j, m)
                wsrc = rng('a', WR + (sig % 4)*8 + m*4)
                xsrc = rng('a', XR + slot*8 + i*4)
                c = "0" if ks == 0 else rng('v', r)
                a(f"v_mfma_f32_16x16x32_bf16 {rng('v', r)}, {wsrc}, {xsrc}, {c}")
                if fill:
                    fill.pop(0)()
        while fill:
            fill.pop(0)()
    stamp(2)
    if finalize:
        stepB_addr(a)
        a("s_lshl_b32 s44, s20, 7")
        a("s_movk_i32 s45, 1024")
        stepB_load(a, "s44", 0, "F0")
        a("s_cmp_lg_u32 s20, 0")
        a("s_cbranch_scc1 K1_B_skip")
        saved = list(a.vmq)
        stepB_load(a, "s45", 32, "F1")
        a.vmq = saved
        a.label("K1_B_skip")
    a("s_nop 7")
    a("s_lshl_b32 s32, s22, 3")
    a("s_add_u32 s32, s32, s20")
    a("s_mul_i32 s32, s32, 180")
    a("s_mul_i32 s33, s21, 9")
    a("s_lshr_b32 s33, s33, 1")
    a("s_add_u32 s32, s32, s33")
    a("s_lshl_b32 s32, s32, 11")
    a(f"s_add_u32 s32, s32, {HF_OFF}")
    a("s_mov_b32 s34, 0xbfb8aa3b")
    a("s_and_b32 s33, s21, 1")
    a("s_cmp_eq_u32 s33, 1")
    a("s_cbranch_scc1 K1_odd")

    def act(i, j, dst):
        g = acc_reg(i, j, 0); u = acc_reg(i, j, 1)
        for r in range(4): a(f"v_cvt_pk_bf16_f32 v{g+r}, 0, v{g+r}")
        for r in range(4): a(f"v_mul_f32 v{T+r}, s34, v{g+r}")
        for r in range(4): a(f"v_exp_f32 v{T+r}, v{T+r}")
        for r in range(4): a(f"v_cvt_pk_bf16_f32 v{u+r}, 0, v{u+r}")
        for r in range(4): a(f"v_add_f32 v{T+r}, 1.0, v{T+r}")
        for r in range(4): a(f"v_rcp_f32 v{T+r}, v{T+r}")
        a("s_nop 0")
        for r in range(4): a(f"v_mul_f32 v{T+r}, v{g+r}, v{T+r}")
        for r in range(4): a(f"v_cvt_pk_bf16_f32 v{T+r}, 0, v{T+r}")
        for r in range(4): a(f"v_mul_f32 v{T+r}, v{T+r}, v{u+r}")
        a(f"v_cvt_pk_bf16_f32 v{dst}, v{T}, v{T+1}")
        a(f"v_cvt_pk_bf16_f32 v{dst+1}, v{T+2}, v{T+3}")

    def epi(odd):
        if not odd:
            groups = [((0,1),0), ((2,3),1), ((4,5),2), ((6,7),3), ((8,),4)]
        else:
            groups = [((0,),0), ((1,2),1), ((3,4),2), ((5,6),3), ((7,8),4)]
        for js, kr in groups:
            a(f"s_add_u32 s35, s32, {kr*2048}")
            for i in range(2):
                d0 = acc_reg(i, js[0], 0)
                if len(js) == 2:
                    act(i, js[0], d0)
                    act(i, js[1], d0+2)
                    a.vm(f"buffer_store_dwordx4 v[{d0}:{d0+3}], v1, s[16:19], s35 offen offset:{i*1024}", "S")
                else:
                    act(i, js[0], d0)
                    a.vm(f"buffer_store_dwordx2 v[{d0}:{d0+1}], v1, s[16:19], s35 offen offset:{i*1024 + (8 if odd else 0)}", "S")
    epi(False)
    a("s_branch K1_end")
    a.label("K1_odd")
    epi(True)
    a.label("K1_end")
    if finalize:
        a("s_waitcnt vmcnt(10)")
        stepB_math(a, "s44", 0, ACC+8)
        a("s_cmp_lg_u32 s20, 0")
        a("s_cbranch_scc1 K1_B_skip2")
        stepB_math(a, "s45", 32, ACC+64)
        a.label("K1_B_skip2")
    stamp(3)
    a.wait_all()
    stamp(4)
    if stamps:
        a("s_memrealtime s[62:63]")
        a("s_waitcnt lgkmcnt(0)")
        for n in range(5):
            a(f"s_sub_u32 s{70+n}, s{40+2*n}, s40")
        a("s_sub_u32 s75, s62, s60")
        a("s_mov_b32 s76, s60")
        a("s_lshl_b32 s36, s2, 3")
        a("s_add_u32 s36, s36, s20")
        a("s_lshl_b32 s36, s36, 5")
        a("s_add_u32 s36, s36, 0xF000000")
        for n in range(7):
            a(f"v_mov_b32 v{T+n}, s{70+n}")
        a(f"v_mov_b32 v{T+8}, 0")
        for n in range(1,5):
            a(f"s_sub_u32 s{90+n}, s{80+2*n}, s80")
        a("s_lshl_b32 s91, s91, 16")
        a("s_or_b32 s91, s91, s92")
        a(f"v_mov_b32 v{T+7}, s91")
        a(f"v_mov_b32 v{T}, s93")
        a(f"buffer_store_dwordx4 v[{T}:{T+3}], v{T+8}, s[16:19], s36 offen")
        a(f"buffer_store_dwordx4 v[{T+4}:{T+7}], v{T+8}, s[16:19], s36 offen offset:16")
        a("s_waitcnt vmcnt(0)")
    a.label("K1_done")
    a("s_endpgm")
    return a.text(), kernel_desc(name, NARCH+NACC, NARCH)

if __name__ == "__main__":
    body, desc = gen_k1(finalize=("fin" in sys.argv), stamps=("stamps" in sys.argv), nolds=("nolds" in sys.argv), nomem=("nomem" in sys.argv))
    hdr = "; @launch kernel=k1_kernel grid=(256,1,1) block=(512,1,1) lds=149760\n.amdgcn_target \"amdgcn-amd-amdhsa--gfx950\"\n"
    open(sys.argv[1], "w").write(hdr + body + desc)
```

```python
from common import *
import sys
ACC = 16
TMP = 88
NARCH = 96
HPD = 8
HSL = HPD + 1
HR = 0
WPD = 6
WSL = 8
WR = HR + HSL*8
NACC = WR + WSL*4
NS = 5
STG = 27648
NSTG = 15
def acc_reg(i, j): return ACC + (j*2+i)*4
def rng(t, b, n=4): return f"{t}[{b}:{b+n-1}]"

def gen_k2(name="k2_kernel", stamps=False):
    a = Asm()
    def stamp(n):
        if stamps:
            a(f"s_memtime s[{60+2*n}:{61+2*n}]")
            a(f"s_memrealtime s[{80+2*n}:{81+2*n}]")
    a.raw(kernel_header(name))
    a("s_cmp_ge_u32 s2, 256")
    a("s_cbranch_scc1 K2_done")
    stamp(0)
    a("s_load_dwordx2 s[4:5], s[0:1], 96")
    a("s_load_dwordx2 s[8:9], s[0:1], 120")
    a("v_lshrrev_b32 v15, 6, v0")
    a("v_and_b32 v0, 63, v0")
    a("v_readfirstlane_b32 s20, v15")
    a("v_lshlrev_b32 v1, 4, v0")
    a("s_and_b32 s23, s2, 7")
    a("s_lshr_b32 s24, s2, 3")
    a("s_and_b32 s25, s23, 3")
    a("s_lshr_b32 s23, s23, 2")
    a("s_lshl_b32 s23, s23, 3")
    a("s_lshr_b32 s22, s24, 2")
    a("s_add_u32 s22, s22, s23")
    a("s_and_b32 s21, s24, 3")
    a("s_mul_i32 s23, s20, 24")
    a("s_mul_i32 s24, s21, 288")
    a("s_movk_i32 s26, 3641")
    a("s_movk_i32 s27, 1152")
    T = TMP
    for q in range(7):
        if q: a(f"v_add_u32 v{T}, {q*64}, v0")
        else: a(f"v_mov_b32 v{T}, v0")
        a(f"v_mul_lo_u32 v{T+1}, v{T}, s26")
        a(f"v_lshrrev_b32 v{T+1}, 16, v{T+1}")
        a(f"v_mul_u32_u24 v{T+2}, 18, v{T+1}")
        a(f"v_sub_u32 v{T+2}, v{T}, v{T+2}")
        a(f"v_add_u32 v{T+1}, s23, v{T+1}")
        a(f"v_mul_lo_u32 v{T+1}, v{T+1}, s27")
        a(f"v_lshl_add_u32 v{T+1}, v{T+2}, 4, v{T+1}")
        a(f"v_add_u32 v{2+q}, s24, v{T+1}")
    a("s_mul_i32 s27, s20, 6912")
    a("s_lshl_b32 s28, s22, 2")
    a("s_add_u32 s28, s28, s20")
    a("s_mul_i32 s28, s28, 180")
    a("s_mul_i32 s29, s25, 45")
    a("s_add_u32 s28, s28, s29")
    a("s_lshl_b32 s28, s28, 11")
    a(f"s_add_u32 s28, s28, {HF_OFF}")
    a("s_mul_i32 s29, s25, 1440")
    a("s_waitcnt lgkmcnt(0)")
    srd(a, 12, 4, 4608*576*2)
    srd(a, 16, 8, WS_BYTES)
    a(f"s_add_u32 s36, s8, {CST_OFF}")
    a("s_addc_u32 s37, s9, 0")
    a("s_and_b32 s37, s37, 0xffff")
    a(f"s_mov_b32 s38, {1152*576*2}")
    a("s_mov_b32 s39, 0x00020000")
    a("s_mov_b32 s43, 0x00020000")

    def dma_setup(stage):
        a(f"s_add_u32 s30, s29, {stage*96}")
        a("s_cmp_lt_u32 s30, 4608")
        a("s_cselect_b32 s40, s12, s36")
        a("s_cselect_b32 s41, s13, s37")
        a("s_cselect_b32 s42, s14, s38")
        a("s_cselect_b32 s31, 0, 4608")
        a("s_sub_u32 s30, s30, s31")
        a("s_mulk_i32 s30, 1152")
    def dma(stage, q):
        if q == 0: dma_setup(stage)
        b = stage % NS
        a(f"s_add_u32 m0, s27, {b*STG + q*1024}")
        if q == 6: a("s_mov_b32 exec_hi, 0xffff")
        else: a("s_nop 0")
        a.vm(f"buffer_load_dwordx4 v{2+q}, s[40:43], s30 offen lds", f"D{stage}")
        if q == 6: a("s_mov_b32 exec_hi, -1")
    def hload(ks, i):
        slot = ks % HSL
        if i == 0: a(f"s_add_u32 s33, s28, {ks*2048}")
        a.vm(f"buffer_load_dwordx4 {rng('a', HR + slot*8 + i*4)}, v1, s[16:19], s33 offen offset:{i*1024}", f"H{ks}")
    def wread(sig, half):
        ks, j = divmod(sig, 9)
        stage, sub = divmod(ks, 3)
        b = stage % NS
        off = sub*9216 + half*4608 + j*32
        dst = WR + (sig % WSL)*4 + half*2
        a.lg(f"ds_read_b64_tr_b16 {rng('a', dst, 2)}, v{9+b} offset:{off}", f"W{sig}")

    for q in range(7): dma(0, q)
    for ks in range(3):
        for i in range(2): hload(ks, i)
    for q in range(7): dma(1, q)
    for ks in range(3, 6):
        for i in range(2): hload(ks, i)
    for q in range(7): dma(2, q)
    for ks in range(6, HPD):
        for i in range(2): hload(ks, i)
    for q in range(7): dma(3, q)
    a(f"v_lshrrev_b32 v{T}, 2, v0")
    a(f"v_mul_u32_u24 v{T}, 288, v{T}")
    a(f"v_and_b32 v{T+1}, 3, v0")
    a(f"v_lshl_add_u32 v9, v{T+1}, 3, v{T}")
    for b in range(1, NS):
        a(f"v_add_u32 v{9+b}, {b*STG}, v9")
    a.wait(vm="D0")
    a("s_barrier")
    stamp(1)
    NJ = 45*9
    for sig in range(WPD):
        for h in range(2): wread(sig, h)
    pend_dma = []
    for sig in range(NJ):
        ks, j = divmod(sig, 9)
        fill = []
        if (sig+WPD) % 27 == 0 and sig+WPD < NJ:
            s1 = (sig+WPD)//27
            a.wait(vm=f"D{s1}")
            a("s_barrier")
            if s1+3 < NSTG:
                pend_dma = [(s1+3, q) for q in range(7)]
        if sig+WPD < NJ:
            for h in range(2):
                fill.append(lambda h=h: wread(sig+WPD, h))
        if j == 0 and ks+HPD < 45:
            for i in range(2):
                fill.append(lambda i=i: hload(ks+HPD, i))
        elif pend_dma and (j % 2 == 1):
            st, q = pend_dma.pop(0)
            fill.append(lambda st=st, q=q: dma(st, q))
        if j == 0:
            a.wait(vm=f"H{ks}", lg=f"W{sig}")
        else:
            a.wait(lg=f"W{sig}")
        slot = ks % HSL
        for i in range(2):
            r = acc_reg(i, j)
            wsrc = rng('a', WR + (sig % WSL)*4)
            hsrc = rng('a', HR + slot*8 + i*4)
            c = "0" if ks == 0 else rng('v', r)
            a(f"v_mfma_f32_16x16x32_bf16 {rng('v', r)}, {wsrc}, {hsrc}, {c}")
            if fill: fill.pop(0)()
        while fill: fill.pop(0)()
    stamp(2)
    a("s_nop 7")
    a("s_lshl_b32 s32, s25, 7")
    a("s_lshl_b32 s33, s22, 3")
    a("s_add_u32 s32, s32, s33")
    a("s_lshl_b32 s33, s20, 1")
    a("s_add_u32 s32, s32, s33")
    a("s_mul_i32 s32, s32, 36")
    a("s_mul_i32 s33, s21, 9")
    a("s_add_u32 s32, s32, s33")
    a("s_lshl_b32 s32, s32, 10")
    a(f"s_add_u32 s32, s32, {PART_OFF}")
    for i in range(2):
        for j in range(9):
            if j % 4 == 0:
                a(f"s_add_u32 s35, s32, {(i*36 + j)*1024}")
            r = acc_reg(i, j)
            a.vm(f"buffer_store_dwordx4 {rng('v', r)}, v1, s[16:19], s35 offen offset:{(j%4)*1024}", "S")
    stamp(3)
    a.wait_all()
    stamp(4)
    if stamps:
        a("s_waitcnt lgkmcnt(0)")
        for n in range(1, 5):
            a(f"s_sub_u32 s{44+n}, s{60+2*n}, s60")
            a(f"s_sub_u32 s{50+n}, s{80+2*n}, s80")
        a("s_lshl_b32 s36, s2, 2")
        a("s_add_u32 s36, s36, s20")
        a("s_lshl_b32 s36, s36, 6")
        a("s_add_u32 s36, s36, 0xF000000")
        for n in range(4):
            a(f"v_mov_b32 v{16+n}, s{45+n}")
            a(f"v_mov_b32 v{20+n}, s{51+n}")
        a("v_mov_b32 v24, s80")
        a("v_mov_b32 v28, 0")
        a("buffer_store_dwordx4 v[16:19], v28, s[16:19], s36 offen")
        a("buffer_store_dwordx4 v[20:23], v28, s[16:19], s36 offen offset:16")
        a("buffer_store_dword v24, v28, s[16:19], s36 offen offset:32")
        a("s_waitcnt vmcnt(0)")
    a.label("K2_done")
    a("s_endpgm")
    return a.text(), kernel_desc(name, NARCH+NACC, NARCH)

if __name__ == "__main__":
    body, desc = gen_k2(stamps=("stamps" in sys.argv))
    hdr = f"; @launch kernel=k2_kernel grid=(256,1,1) block=(256,1,1) lds={NS*STG}\n.amdgcn_target \"amdgcn-amd-amdhsa--gfx950\"\n"
    open("k2.s", "w").write(hdr + body + desc)
```

```python
from common import *
import sys
def gen_k3(name="k3_kernel"):
    a = Asm()
    a.raw(kernel_header(name))
    a("s_cmp_ge_u32 s2, 1152")
    a("s_cbranch_scc1 K3_done")
    a("s_load_dwordx2 s[4:5], s[0:1], 0")
    a("s_load_dwordx2 s[6:7], s[0:1], 64")
    a("s_load_dwordx2 s[8:9], s[0:1], 120")
    a("s_load_dwordx2 s[10:11], s[0:1], 104")
    a("v_lshrrev_b32 v15, 6, v0")
    a("v_and_b32 v0, 63, v0")
    a("v_readfirstlane_b32 s20, v15")
    a("v_lshlrev_b32 v1, 4, v0")
    a("v_and_b32 v2, 15, v0")
    a("v_lshrrev_b32 v3, 4, v0")
    a("s_lshl_b32 s21, s2, 2")
    a("s_add_u32 s21, s21, s20")
    a("s_mul_i32 s22, s21, 7282")
    a("s_lshr_b32 s22, s22, 18")
    a("s_mul_i32 s23, s22, 36")
    a("s_sub_u32 s23, s21, s23")
    a("s_lshl_b32 s24, s21, 10")
    a(f"s_add_u32 s24, s24, {PART_OFF}")
    a(f"s_add_u32 s25, s24, {4718592}")
    a(f"s_add_u32 s26, s24, {2*4718592}")
    a(f"s_add_u32 s27, s24, {3*4718592}")
    a("v_mul_u32_u24 v4, 1152, v2")
    a("v_lshl_add_u32 v4, v3, 3, v4")
    a("s_mul_i32 s28, s22, 18432")
    a("s_lshl_b32 s29, s23, 5")
    a("s_add_u32 s28, s28, s29")
    a("s_lshl_b32 s30, s28, 1")
    a("v_lshlrev_b32 v5, 1, v4")
    a("s_lshr_b32 s31, s22, 1")
    a("s_mul_i32 s31, s31, 18")
    a("s_lshr_b32 s32, s23, 1")
    a("s_add_u32 s31, s31, s32")
    a("s_lshl_b32 s31, s31, 11")
    a("s_and_b32 s32, s22, 1")
    a("s_lshl_b32 s32, s32, 10")
    a("s_add_u32 s31, s31, s32")
    a("s_and_b32 s32, s23, 1")
    a("s_lshl_b32 s32, s32, 9")
    a("s_add_u32 s31, s31, s32")
    if XNF_OFF: a(f"s_add_u32 s31, s31, {XNF_OFF}")
    a("v_lshrrev_b32 v6, 1, v3")
    a("v_lshlrev_b32 v6, 8, v6")
    a("v_lshl_add_u32 v6, v2, 4, v6")
    a("v_and_b32 v7, 1, v3")
    a("v_lshl_add_u32 v6, v7, 3, v6")
    a("v_lshlrev_b32 v7, 3, v3")
    a("s_waitcnt lgkmcnt(0)")
    srd(a, 12, 4, 2048*576*2)
    srd(a, 16, 8, WS_BYTES)
    srd(a, 36, 6, 576*2)
    srd(a, 40, 10, 2048*576*4)
    a("buffer_load_dwordx4 v[16:19], v1, s[16:19], s24 offen")
    a("buffer_load_dwordx4 v[20:23], v1, s[16:19], s25 offen")
    a("buffer_load_dwordx4 v[24:27], v1, s[16:19], s26 offen")
    a("buffer_load_dwordx4 v[28:31], v1, s[16:19], s27 offen")
    a("buffer_load_dwordx2 v[32:33], v4, s[12:15], s28 offen")
    a("buffer_load_dwordx2 v[34:35], v6, s[16:19], s31 offen")
    a("buffer_load_dwordx2 v[36:37], v7, s[36:39], s29 offen")
    a("s_waitcnt vmcnt(0)")
    for (src, dst) in ((32, 40), (34, 44), (36, 48)):
        a(f"v_lshlrev_b32 v{dst}, 16, v{src}")
        a(f"v_and_b32 v{dst+1}, 0xffff0000, v{src}")
        a(f"v_lshlrev_b32 v{dst+2}, 16, v{src+1}")
        a(f"v_and_b32 v{dst+3}, 0xffff0000, v{src+1}")
    for r in range(4):
        a(f"v_add_f32 v{16+r}, v{16+r}, v{20+r}")
        a(f"v_add_f32 v{24+r}, v{24+r}, v{28+r}")
        a(f"v_mul_f32 v{44+r}, v{44+r}, v{48+r}")
    for r in range(4):
        a(f"v_add_f32 v{16+r}, v{16+r}, v{24+r}")
        a(f"v_cvt_pk_bf16_f32 v{44+r}, 0, v{44+r}")
    for r in range(4):
        a(f"v_add_f32 v{16+r}, v{16+r}, v{44+r}")
    for r in range(4):
        a(f"v_add_f32 v{16+r}, v{40+r}, v{16+r}")
    a("buffer_store_dwordx4 v[16:19], v5, s[40:43], s30 offen")
    a("s_waitcnt vmcnt(0)")
    a.label("K3_done")
    a("s_endpgm")
    return a.text(), kernel_desc(name, 56, 56)
```

```python
import sys
from common import *
import k0, k1, k2, k3
def build(path):
    hdr_src = open("parallel_sum__ssm_conv_s5__swiglu_ffn__prompt.s.ref").read().split("\n")
    head = []
    for l in hdr_src:
        if l.startswith("; Override") or l.startswith("; grid=ceil") or "@launch" in l: continue
        if not l.startswith(";"): break
        head.append(l)
    head.append(f"; @launch kernel=k0_kernel grid=(256,1,1) block=(1024,1,1) lds={k0.K0_LDS}")
    head.append(f"; @launch kernel=k1_kernel grid=(256,1,1) block=(512,1,1) lds=149760")
    head.append(f"; @launch kernel=k2_kernel grid=(256,1,1) block=(256,1,1) lds={k2.NS*k2.STG}")
    head.append(f"; @launch kernel=k3_kernel grid=(1152,1,1) block=(256,1,1) lds=0")
    out = "\n".join(head) + "\n.amdgcn_target \"amdgcn-amd-amdhsa--gfx950\"\n"
    parts = [k0.gen_k0(), k1.gen_k1(finalize=True), k2.gen_k2(), k3.gen_k3()]
    for b, d in parts: out += b
    for b, d in parts: out += d
    open(path, "w").write(out)
if __name__ == "__main__":
    build(sys.argv[1] if len(sys.argv) > 1 else "parallel_sum__ssm_conv_s5__swiglu_ffn__prompt.s")
```

```python
class Asm:
    def __init__(self):
        self.lines = []
        self.vmq = []
        self.lgq = []
        self.lbl = 0
    def __call__(self, s):
        self.lines.append("    " + s)
    def raw(self, s):
        self.lines.append(s)
    def label(self, name):
        self.lines.append(name + ":")
    def comment(self, s):
        self.lines.append("    ; " + s)
    def newlabel(self, p="L"):
        self.lbl += 1
        return f"{p}_{self.lbl}"
    def vm(self, s, tag):
        self(s); self.vmq.append(tag)
    def lg(self, s, tag):
        self(s); self.lgq.append(tag)
    def _need(self, q, tag):
        idx = [i for i, t in enumerate(q) if t == tag]
        if not idx:
            return None
        return len(q) - 1 - idx[-1]
    def wait(self, vm=None, lg=None):
        parts = []
        if vm is not None:
            n = self._need(self.vmq, vm)
            if n is not None:
                assert n <= 63
                parts.append(f"vmcnt({n})")
                self.vmq = self.vmq[len(self.vmq)-n:] if n else []
        if lg is not None:
            n = self._need(self.lgq, lg)
            if n is not None:
                assert n <= 15, n
                parts.append(f"lgkmcnt({n})")
                self.lgq = self.lgq[len(self.lgq)-n:] if n else []
        if parts:
            self("s_waitcnt " + " ".join(parts))
    def wait_all(self, vm=True, lg=True):
        parts = []
        if vm: parts.append("vmcnt(0)"); self.vmq = []
        if lg: parts.append("lgkmcnt(0)"); self.lgq = []
        self("s_waitcnt " + " ".join(parts))
    def text(self):
        return "\n".join(self.lines) + "\n"

def kernel_header(name):
    return f""".text
.globl {name}
.p2align 8
.type {name},@function
{name}:
"""

def kernel_desc(name, vgpr, accum, sgpr=102):
    return f""".section .rodata,"a"
.p2align 6
.amdhsa_kernel {name}
  .amdhsa_next_free_vgpr {vgpr}
  .amdhsa_next_free_sgpr {sgpr}
  .amdhsa_accum_offset {accum}
  .amdhsa_group_segment_fixed_size 0
  .amdhsa_kernarg_size 128
  .amdhsa_user_sgpr_count 2
  .amdhsa_user_sgpr_kernarg_segment_ptr 1
  .amdhsa_system_sgpr_workgroup_id_x 1
  .amdhsa_float_denorm_mode_32 3
.end_amdhsa_kernel
"""

XNF_OFF = 0x0000000
HF_OFF  = 0x0400000
CST_OFF = 0x2000000
GLR_OFF = 0x2200000
GLI_OFF = 0x2700000
AGG_OFF = 0x2C00000
PW_OFF  = 0x2D00000
PWI_OFF = 0x2D40000
PT_OFF  = 0x2E00000
FLAG_OFF= 0x2F00000
FLAG2_OFF=0x2F20000

PART_OFF= 0x3000000
WS_BYTES = 0x10000000

def srd(a, sbase, sptr, nbytes):
    a(f"s_mov_b32 s{sbase}, s{sptr}")
    a(f"s_and_b32 s{sbase+1}, s{sptr+1}, 0xffff")
    a(f"s_mov_b32 s{sbase+2}, {nbytes}")
    a(f"s_mov_b32 s{sbase+3}, 0x00020000")
```

```python
from common import *
import sys
LOG2E = 0x3fb8aa3b
INV2PI = 0x3e22f983
K0_LDS = 0

def gen_k0(name="k0_kernel", stamps=False, prefetch=2):
    a = Asm()
    def stamp(n):
        if stamps:
            a(f"s_memrealtime s[{70+2*n}:{71+2*n}]")
    a.raw(kernel_header(name))
    a("s_cmp_ge_u32 s2, 256")
    a("s_cbranch_scc1 K0_done")
    stamp(0)
    a("s_load_dwordx16 s[36:51], s[0:1], 0")
    a("s_load_dwordx2 s[8:9], s[0:1], 120")
    a("s_load_dwordx4 s[64:67], s[0:1], 80")
    a("v_lshrrev_b32 v1, 6, v0")
    a("v_and_b32 v0, 63, v0")
    a("v_readfirstlane_b32 s20, v1")
    a("v_lshrrev_b32 v2, 4, v0")
    a("v_and_b32 v3, 15, v0")
    a("s_waitcnt lgkmcnt(0)")
    srd(a, 16, 8, WS_BYTES)
    a("s_cmp_gt_u32 s20, 1")
    a("s_cbranch_scc1 K0_side")
    srd(a, 12, 36, 2048*576*2)
    a("v_mul_u32_u24 v4, 1152, v2")
    a("v_lshl_add_u32 v4, v3, 3, v4")
    a("s_lshl_b32 s23, s2, 3")
    a("s_lshl_b32 s24, s20, 2")
    a("s_add_u32 s23, s23, s24")
    a("s_mul_i32 s25, s23, 1152")
    for i in range(9):
        a(f"buffer_load_dwordx2 v[{8+2*i}:{9+2*i}], v4, s[12:15], s25 offen offset:{i*128}")
    a("v_add_u32 v28, s23, v2")
    a("v_lshrrev_b32 v29, 5, v28")
    a(f"v_mul_u32_u24 v29, {18*2048}, v29")
    a("v_bfe_u32 v30, v28, 4, 1")
    a("v_lshl_add_u32 v29, v30, 10, v29")
    a("v_and_b32 v30, 15, v28")
    a("v_lshl_add_u32 v29, v30, 4, v29")
    a("v_lshrrev_b32 v30, 3, v3")
    a("v_lshl_add_u32 v29, v30, 11, v29")
    a("v_bfe_u32 v30, v3, 1, 2")
    a("v_lshl_add_u32 v29, v30, 8, v29")
    a("v_and_b32 v30, 1, v3")
    a("v_lshl_add_u32 v29, v30, 3, v29")
    a("v_mov_b32 v30, 0x3f803f80")
    a("v_mov_b32 v26, 0")
    a("v_mov_b32 v27, 0")
    a("s_waitcnt vmcnt(0)")
    stamp(1)
    for i in range(18):
        d = 26 + (i & 1)
        a(f"v_dot2_f32_bf16 v{d}, v{8+i}, v30, v{d}")
    a("s_nop 2")
    a("v_add_f32 v26, v26, v27")
    def red(v):
        for sh in (8, 4, 2, 1):
            a("s_nop 1")
            a(f"v_add_f32_dpp v{v}, v{v}, v{v} row_ror:{sh} row_mask:0xf bank_mask:0xf")
    red(26)
    a("v_mul_f32 v26, 0x3ae38e39, v26")
    a("v_mov_b32 v27, 0")
    a("v_mov_b32 v28, 0")
    for i in range(18):
        t = 40 + 2*(i & 3)
        a(f"v_lshlrev_b32 v{t}, 16, v{8+i}")
        a(f"v_and_b32 v{t+1}, 0xffff0000, v{8+i}")
        a(f"v_sub_f32 v{t}, v{t}, v26")
        a(f"v_sub_f32 v{t+1}, v{t+1}, v26")
        a(f"v_fmac_f32 v27, v{t}, v{t}")
        a(f"v_fmac_f32 v28, v{t+1}, v{t+1}")
    a("v_add_f32 v27, v27, v28")
    red(27)
    a("v_mul_f32 v27, 0x3ae38e39, v27")
    a("v_cvt_pk_bf16_f32 v26, 0, v26")
    a("v_cvt_pk_bf16_f32 v27, 0, v27")
    a("v_add_f32 v27, 0x3727c5ac, v27")
    a("v_cvt_pk_bf16_f32 v27, 0, v27")
    a("v_sqrt_f32 v27, v27")
    a("s_nop 0")
    a("v_cvt_pk_bf16_f32 v27, 0, v27")
    a("v_rcp_f32 v27, v27")
    a(f"s_mov_b32 s26, {XNF_OFF}")
    a(f"s_mov_b32 s27, {XNF_OFF + 4096}")
    a("s_nop 0")
    for i in range(18):
        t = 40 + 2*(i & 3)
        a(f"v_lshlrev_b32 v{t}, 16, v{8+i}")
        a(f"v_and_b32 v{t+1}, 0xffff0000, v{8+i}")
        a(f"v_sub_f32 v{t}, v{t}, v26")
        a(f"v_sub_f32 v{t+1}, v{t+1}, v26")
        a(f"v_cvt_pk_bf16_f32 v{t}, 0, v{t}")
        a(f"v_cvt_pk_bf16_f32 v{t+1}, 0, v{t+1}")
        a(f"v_mul_f32 v{t}, v{t}, v27")
        a(f"v_mul_f32 v{t+1}, v{t+1}, v27")
        a(f"v_cvt_pk_bf16_f32 v{8+i}, v{t}, v{t+1}")
        if i & 1:
            a(f"s_mov_b32 s26, {XNF_OFF + (i//2)*4096}")
            a(f"buffer_store_dwordx2 v[{8+i-1}:{8+i}], v29, s[16:19], s26 offen")
    a("s_branch K0_end")
    a.label("K0_side")
    a("s_sub_u32 s24, s20, 2")
    a("s_lshl_b32 s24, s24, 6")
    a("v_add_u32 v7, s24, v0")
    srd(a, 52, 46, 576*576*2)
    srd(a, 56, 48, 576*576*2)
    a("s_movk_i32 s29, 4608")
    a(f"s_mov_b32 s27, {CST_OFF}")
    a("s_mov_b32 s26, 7456541")
    for rnd in range(3):
        a(f"v_add_u32 v4, {rnd*128}, v7")
        a("v_cmp_gt_u32 vcc, 324, v4")
        a("s_and_saveexec_b64 s[60:61], vcc")
        a(f"s_cbranch_execz K0_dskip{rnd}")
        a("s_mul_i32 s25, s2, 324")
        a("v_add_u32 v4, s25, v4")
        a("v_mul_hi_u32 v5, v4, s26")
        a("v_mul_u32_u24 v6, 576, v5")
        a("v_sub_u32 v6, v4, v6")
        a("v_cmp_le_u32 vcc, 72, v5")
        a("v_subrev_u32 v8, 72, v5")
        a("s_nop 1")
        a("v_cndmask_b32 v8, v5, v8, vcc")
        a("v_mul_u32_u24 v9, 9216, v8")
        a("v_lshl_add_u32 v9, v6, 1, v9")
        a("s_and_saveexec_b64 s[62:63], vcc")
        a(f"s_cbranch_execz K0_dre{rnd}")
        for e in range(8):
            a(f"buffer_load_ushort v{16+e}, v9, s[56:59], {'0' if e < 4 else 's29'} offen offset:{(e%4)*1152}")
        a("s_waitcnt vmcnt(0)")
        for e in range(8):
            a(f"v_xor_b32 v{16+e}, 0x8000, v{16+e}")
        a.label(f"K0_dre{rnd}")
        a("s_andn2_b64 exec, s[62:63], exec")
        a(f"s_cbranch_execz K0_dst{rnd}")
        for e in range(8):
            a(f"buffer_load_ushort v{16+e}, v9, s[52:55], {'0' if e < 4 else 's29'} offen offset:{(e%4)*1152}")
        a("s_waitcnt vmcnt(0)")
        a.label(f"K0_dst{rnd}")
        a("s_mov_b64 exec, s[62:63]")
        for r in range(4):
            a(f"v_lshl_or_b32 v{12+r}, v{17+2*r}, 16, v{16+2*r}")
        a("v_lshlrev_b32 v10, 1, v6")
        a("v_add_u32 v11, 1, v10")
        a("v_cndmask_b32 v10, v10, v11, vcc")
        a("v_mul_u32_u24 v10, 1152, v10")
        a("v_lshl_add_u32 v10, v8, 4, v10")
        a("buffer_store_dwordx4 v[12:15], v10, s[16:19], s27 offen")
        a.label(f"K0_dskip{rnd}")
        a("s_mov_b64 exec, s[60:61]")
        a("s_nop 1")
    if prefetch:
        NPF = prefetch
        a("v_lshlrev_b32 v5, 4, v7")
        a(f"s_mul_i32 s25, s2, {2304*NPF}")
        for sp in (64, 66):
            srd(a, 52, sp, 576*4608*2)
            a(f"s_add_u32 s54, s25, {2304*NPF}")
            for q in range((2304*NPF + 2047)//2048):
                a(f"s_add_u32 s26, s25, {q*2048}")
                a(f"buffer_load_dwordx4 v[{48+4*(q%4)}:{51+4*(q%4)}], v5, s[52:55], s26 offen")
    a("s_cmp_eq_u32 s20, 2")
    a("s_cbranch_scc0 K0_tab")
    a("v_cmp_gt_u32 vcc, 18, v0")
    a("s_and_saveexec_b64 s[60:61], vcc")
    a("v_mov_b32 v4, -1")
    a("v_mov_b32 v5, -1")
    a("v_lshlrev_b32 v6, 3, v0")
    a("s_mul_i32 s25, s2, 144")
    a(f"s_add_u32 s25, s25, {AGG_OFF}")
    a("buffer_store_dwordx2 v[4:5], v6, s[16:19], s25 offen")
    a("s_mov_b64 exec, 1")
    a("v_mov_b32 v4, 0")
    a("s_lshl_b32 s25, s2, 2")
    a(f"s_add_u32 s25, s25, {FLAG2_OFF}")
    a("buffer_store_dword v4, v4, s[16:19], s25 offen")
    a("s_mov_b64 exec, s[60:61]")
    a("s_branch K0_end")
    a.label("K0_tab")
    a("s_cmp_gt_u32 s2, 8")
    a("s_cbranch_scc1 K0_end")
    a("s_lshl_b32 s25, s2, 6")
    a("v_add_u32 v5, s25, v0")
    a("v_lshlrev_b32 v6, 1, v5")
    a("global_load_ushort v8, v6, s[38:39]")
    a("global_load_ushort v9, v6, s[40:41]")
    a("global_load_ushort v10, v6, s[50:51]")
    a("s_waitcnt vmcnt(0)")
    a("v_lshlrev_b32 v8, 16, v8")
    a("v_lshlrev_b32 v9, 16, v9")
    a("v_lshlrev_b32 v10, 16, v10")
    a(f"v_mul_f32 v10, {LOG2E}, v10")
    a("v_exp_f32 v10, v10")
    a("s_nop 0")
    a("v_cvt_pk_bf16_f32 v10, 0, v10")
    a("v_mul_f32 v11, v10, v8")
    a("v_mul_f32 v12, v10, v9")
    a(f"v_mul_f32 v20, {LOG2E}, v11")
    a(f"v_mul_f32 v21, {INV2PI}, v12")
    a("v_exp_f32 v20, v20")
    a("v_fract_f32 v21, v21")
    a("s_nop 0")
    a("v_cos_f32 v22, v21")
    a("v_sin_f32 v23, v21")
    a("s_nop 0")
    a("v_mul_f32 v64, v20, v22")
    a("v_mul_f32 v65, v20, v23")
    a("v_add_f32 v16, -1.0, v64")
    a("v_mul_f32 v17, v8, v8")
    a("v_fmac_f32 v17, v9, v9")
    a("v_rcp_f32 v18, v17")
    a("v_mul_f32 v66, v16, v8")
    a("v_fmac_f32 v66, v65, v9")
    a("v_mul_f32 v67, v65, v8")
    a("v_fma_f32 v67, -v16, v9, v67")
    a("v_fma_f32 v19, -v17, v18, 1.0")
    a("v_fmac_f32 v18, v19, v18")
    a("v_add_f32 v18, v18, v18")
    a("v_mul_f32 v66, v66, v18")
    a("v_mul_f32 v67, v67, v18")
    a("v_mov_b32 v72, v64")
    a("v_mov_b32 v73, v65")
    def cmul(d, x, y):
        a(f"v_mul_f32 v{d}, v{x}, v{y}")
        a(f"v_mul_f32 v{d+1}, v{x}, v{y+1}")
        a(f"v_fma_f32 v{d}, -v{x+1}, v{y+1}, v{d}")
        a(f"v_fmac_f32 v{d+1}, v{x+1}, v{y}")
    for j in range(1, 16):
        cmul(72+2*j, 64, 70+2*j)
    a("v_mov_b32 v68, v102")
    a("v_mov_b32 v69, v103")
    cmul(24, 68, 68)
    cmul(26, 24, 24)
    cmul(24, 26, 26)
    cmul(70, 24, 24)
    a("v_mul_u32_u24 v6, 160, v5")
    a(f"s_mov_b32 s25, {PT_OFF}")
    for q in range(10):
        a(f"buffer_store_dwordx4 v[{64+4*q}:{67+4*q}], v6, s[16:19], s25 offen offset:{q*16}")
    a.label("K0_end")
    stamp(2)
    if stamps:
        a("s_waitcnt vmcnt(0)")
        stamp(3)
        a("s_mov_b64 exec, -1")
        a("s_waitcnt lgkmcnt(0)")
        for n in range(1, 4):
            a(f"s_sub_u32 s{54+n}, s{70+2*n}, s70")
            a(f"v_mov_b32 v{16+n}, s{54+n}")
        a("v_mov_b32 v16, s70")
        a("s_lshl_b32 s30, s2, 2")
        a("s_add_u32 s30, s30, s20")
        a("s_lshl_b32 s30, s30, 4")
        a("s_add_u32 s30, s30, 0xF200000")
        a("v_mov_b32 v30, 0")
        a("buffer_store_dwordx4 v[16:19], v30, s[16:19], s30 offen")
        a("s_waitcnt vmcnt(0)")
    a.label("K0_done")
    a("s_endpgm")
    return a.text(), kernel_desc(name, 104, 104)

if __name__ == "__main__":
    body, desc = gen_k0(stamps=("stamps" in sys.argv), prefetch=(0 if "nopf" in sys.argv else 2))
    hdr = f"; @launch kernel=k0_kernel grid=(256,1,1) block=(256,1,1) lds=0\n.amdgcn_target \"amdgcn-amd-amdhsa--gfx950\"\n"
    open(sys.argv[1], "w").write(hdr + body + desc)
```

```python
from common import *
import sys
ACC = 16
SAC = 160
TMP = 184
NARCH = 200
XR = 0
FR = 24
NRING = 8
NACC = 56
NS = 3
SSTG = 4608
WBASE = NS*SSTG
STG = 36864
PD = 5
K1_LDS = WBASE + NS*STG
SL_OFF = 16384
SL_STR = 208
EG_OFF = SL_OFF + 256*SL_STR
PTL_OFF = EG_OFF + 2560
def acc_reg(i, j, m): return ACC + ((j*2 + i)*2 + m)*4
def sacc_reg(i, u): return SAC + (u*2 + i)*4
def rng(t, b, n=4): return f"{t}[{b}:{b+n-1}]"

def gen_k1(name="k1_kernel", stamps=False, pf_wd=True):
    a = Asm()
    def stamp(n):
        if stamps:
            a(f"s_memrealtime s[{80+2*n}:{81+2*n}]")
    T = TMP
    a.raw(kernel_header(name))
    a("s_cmp_ge_u32 s2, 256")
    a("s_cbranch_scc1 K1_done")
    stamp(0)
    a("s_load_dwordx4 s[4:7], s[0:1], 80")
    a("s_load_dwordx2 s[8:9], s[0:1], 120")
    a("s_load_dwordx4 s[36:39], s[0:1], 24")
    a("s_load_dwordx2 s[10:11], s[0:1], 96")
    a("v_lshrrev_b32 v15, 6, v0")
    a("v_and_b32 v0, 63, v0")
    a("v_readfirstlane_b32 s20, v15")
    a("v_lshlrev_b32 v1, 4, v0")
    a("s_and_b32 s21, s2, 7")
    a("s_lshr_b32 s22, s2, 3")
    a("s_and_b32 s23, s22, 3")
    a("s_lshl_b32 s21, s21, 2")
    a("s_add_u32 s21, s21, s23")
    a("s_lshr_b32 s22, s22, 2")
    a("s_and_b32 s23, s20, 3")
    a("s_lshl_b32 s23, s23, 4")
    a("s_mul_i32 s24, s21, 288")
    a("s_movk_i32 s25, 3641")
    a("s_movk_i32 s26, 9216")
    a("s_mul_i32 s27, s20, 4608")
    a(f"s_add_u32 s27, s27, {WBASE}")
    a("s_mul_i32 s29, s20, 576")
    a("s_lshl_b32 s28, s22, 3")
    a("s_add_u32 s28, s28, s20")
    a(f"s_mul_i32 s28, s28, {18*2048}")
    if XNF_OFF: a(f"s_add_u32 s28, s28, {XNF_OFF}")
    for q in range(5):
        d = 2+q
        if q: a(f"v_add_u32 v{T}, {q*64}, v0")
        else: a(f"v_mov_b32 v{T}, v0")
        a(f"v_mul_lo_u32 v{T+1}, v{T}, s25")
        a(f"v_lshrrev_b32 v{T+1}, 16, v{T+1}")
        a(f"v_mul_u32_u24 v{T+2}, 18, v{T+1}")
        a(f"v_sub_u32 v{T+2}, v{T}, v{T+2}")
        a(f"v_add_u32 v{T+1}, s23, v{T+1}")
        a(f"v_and_b32 v{T+3}, 0x23, v{T+1}")
        a(f"v_bfe_u32 v{T+4}, v{T+1}, 2, 2")
        a(f"v_lshl_add_u32 v{T+3}, v{T+4}, 3, v{T+3}")
        a(f"v_bfe_u32 v{T+4}, v{T+1}, 4, 1")
        a(f"v_lshl_add_u32 v{T+3}, v{T+4}, 2, v{T+3}")
        a(f"v_mul_lo_u32 v{T+3}, v{T+3}, s26")
        a(f"v_lshl_add_u32 v{T+3}, v{T+2}, 4, v{T+3}")
        a(f"v_add_u32 v{d}, s24, v{T+3}")
    a("s_mul_i32 s23, s20, 36")
    a(f"v_add_u32 v{T}, s23, v0")
    a(f"v_lshrrev_b32 v{T+1}, 3, v{T}")
    a(f"v_xor_b32 v{T+2}, v{T}, v{T+1}")
    a(f"v_and_b32 v{T+2}, 7, v{T+2}")
    a("s_mul_i32 s23, s21, 18")
    a("s_cmp_lt_u32 s20, 4")
    a("s_cselect_b32 s24, 0, 18")
    a("s_sub_u32 s23, s23, s24")
    a(f"v_add_u32 v{T+1}, s23, v{T+1}")
    a(f"v_mul_u32_u24 v{T+1}, 1152, v{T+1}")
    a(f"v_lshl_add_u32 v7, v{T+2}, 4, v{T+1}")
    a("s_waitcnt lgkmcnt(0)")
    a("s_cmp_lt_u32 s20, 4")
    a("s_cselect_b32 s12, s4, s6")
    a("s_cselect_b32 s13, s5, s7")
    a("s_cselect_b32 s40, s36, s38")
    a("s_cselect_b32 s41, s37, s39")
    a("s_and_b32 s13, s13, 0xffff")
    a(f"s_mov_b32 s14, {576*4608*2}")
    a("s_mov_b32 s15, 0x00020000")
    a("s_and_b32 s41, s41, 0xffff")
    a(f"s_mov_b32 s42, {576*576*2}")
    a("s_mov_b32 s43, 0x00020000")
    srd(a, 16, 8, WS_BYTES)
    srd(a, 44, 10, 4608*576*2)

    def dma(stage, q):
        b = stage % NS
        if q < 5:
            a(f"s_add_u32 m0, s27, {b*STG + q*1024}")
            a(f"s_mov_b32 s30, {stage*64*9216}")
            if q == 4: a("s_mov_b32 exec_hi, 0")
            a.vm(f"buffer_load_dwordx4 v{2+q}, s[12:15], s30 offen lds", f"D{stage}")
            if q == 4: a("s_mov_b32 exec_hi, -1")
        else:
            a(f"s_add_u32 m0, s29, {b*SSTG}")
            a(f"s_movk_i32 s30, {stage*128}")
            a("s_mov_b32 exec_hi, 0xf")
            a.vm(f"buffer_load_dwordx4 v7, s[40:43], s30 offen lds", f"D{stage}")
            a("s_mov_b32 exec_hi, -1")
    def xload(ks, i):
        slot = ks % 3
        if i == 0:
            a(f"s_add_u32 s31, s28, {ks*2048}")
        a.vm(f"buffer_load_dwordx4 {rng('a', XR + slot*8 + i*4)}, v1, s[16:19], s31 offen offset:{i*1024}", f"X{ks}")
    NF = 21
    def fread(f):
        ks, n = divmod(f, NF)
        stage, sub = divmod(ks, 2)
        b = stage % NS
        dst = FR + (f % NRING)*4
        if n < 18:
            j, m = divmod(n, 2)
            off = m*18432 + sub*9216 + j*32
            a.lg(f"ds_read_b64_tr_b16 {rng('a', dst, 2)}, v{11+b} offset:{off}", f"F{f}")
            a.lg(f"ds_read_b64_tr_b16 {rng('a', dst+2, 2)}, v{11+b} offset:{off+4608}", f"F{f}")
        else:
            u = n - 18
            areg = (8 + sub) if u < 2 else (T+12+sub)
            a.lg(f"ds_read_b128 {rng('a', dst)}, v{areg} offset:{b*SSTG + (2048 if u == 1 else 0)}", f"F{f}")

    for q in range(6): dma(0, q)
    for i in range(2): xload(0, i)
    for q in range(6): dma(1, q)
    for i in range(2): xload(1, i)
    a(f"v_lshrrev_b32 v{T}, 2, v0")
    a(f"v_mul_u32_u24 v{T}, 288, v{T}")
    a(f"v_and_b32 v{T+1}, 3, v0")
    a(f"v_lshl_add_u32 v11, v{T+1}, 3, v{T}")
    a(f"v_add_u32 v11, {WBASE}, v11")
    for b in range(1, NS):
        a(f"v_add_u32 v{11+b}, {b*STG}, v11")
    a(f"v_and_b32 v{T}, 15, v0")
    a(f"v_lshrrev_b32 v{T+1}, 4, v0")
    a(f"v_xor_b32 v{T+2}, v{T}, v{T+1}")
    a(f"v_and_b32 v{T+2}, 7, v{T+2}")
    a(f"v_lshlrev_b32 v8, 7, v{T}")
    a(f"v_lshl_add_u32 v8, v{T+2}, 4, v8")
    a("v_xor_b32 v9, 64, v8")
    a(f"v_and_b32 v{T+3}, 3, v0")
    a(f"v_xor_b32 v{T+2}, v{T+3}, v{T+1}")
    a(f"v_lshlrev_b32 v{T+12}, 7, v{T+3}")
    a(f"v_lshl_add_u32 v{T+12}, v{T+2}, 4, v{T+12}")
    a(f"v_add_u32 v{T+12}, 4096, v{T+12}")
    a(f"v_xor_b32 v{T+13}, 64, v{T+12}")
    a("s_and_b32 s23, s20, 3")
    a("s_mul_i32 s23, s23, 36")
    a(f"v_add_u32 v{T}, s23, v0")
    a(f"v_mul_u32_u24 v{T+1}, 3641, v{T}")
    a(f"v_lshrrev_b32 v{T+1}, 16, v{T+1}")
    a(f"v_mul_u32_u24 v{T+2}, 18, v{T+1}")
    a(f"v_sub_u32 v{T+2}, v{T}, v{T+2}")
    a("s_lshl_b32 s23, s22, 3")
    a(f"v_add_u32 v{T+1}, s23, v{T+1}")
    a(f"v_mul_lo_u32 v{T+1}, v{T+1}, s26")
    a(f"v_lshl_add_u32 v{T+1}, v{T+2}, 4, v{T+1}")
    a("s_mul_i32 s24, s21, 288")
    a(f"v_add_u32 v14, s24, v{T+1}")
    def wpf(stage):
        a(f"s_mov_b32 s49, {stage*64*9216}")
        a("s_mov_b32 exec_hi, 0xf")
        a.vm(f"buffer_load_dwordx4 v[{T+4}:{T+7}], v14, s[12:15], s49 offen", "PF")
        a("s_mov_b32 exec_hi, -1")
    for st in (2, 3): wpf(st)
    a("s_mul_i32 s49, s21, 18")
    a(f"v_add_u32 v{T+9}, s49, v0")
    a(f"v_lshlrev_b32 v{T+9}, 3, v{T+9}")
    a(f"v_lshl_add_u32 v10, s20, 10, v1")
    a("s_mul_i32 s48, s2, 20736")
    a("s_add_u32 s46, s48, 20736")
    a.wait(vm="D0")
    a("s_barrier")
    stamp(1)
    TOT = 18*NF
    for f in range(PD): fread(f)
    pend = []
    pf_left = 3 if pf_wd else 0
    for f in range(TOT):
        ks, n = divmod(f, NF)
        fill = []
        if (f+PD) % (2*NF) == 0 and f+PD < TOT:
            s1 = (f+PD)//(2*NF)
            a.wait(vm=f"D{s1}")
            a("s_barrier")
            if s1+1 <= 8:
                pend = [(s1+1, q) for q in range(6)]
        if f+PD < TOT:
            fill.append(lambda: fread(f+PD))
        if n == 0 and ks+2 < 18:
            for i in range(2):
                fill.append(lambda i=i: xload(ks+2, i))
        elif pend and n % 2 == 1:
            st, q = pend.pop(0)
            fill.append(lambda st=st, q=q: dma(st, q))
        elif ks == 16 and n == 6:
            def ptl():
                a(f"v_lshl_add_u32 v{T}, s20, 10, v1")
                a(f"v_cmp_gt_u32 vcc, 2880, v{T}")
                a("s_and_saveexec_b64 s[50:51], vcc")
                a(f"s_mul_i32 s49, s21, 2880")
                a(f"s_add_u32 s49, s49, {PT_OFF}")
                a.vm(f"buffer_load_dwordx4 v[{T+4}:{T+7}], v{T}, s[16:19], s49 offen", "PT")
                a("s_mov_b64 exec, s[50:51]")
                a("s_nop 3")
            fill.append(ptl)
        elif n == 14 and ks % 2 == 0 and ks//2 + 4 <= 8:
            fill.append(lambda: wpf(ks//2 + 4))
        elif pf_left and ks >= 4 and n == 10:
            k = 3 - pf_left; pf_left -= 1
            def pf(k=k):
                a(f"s_add_u32 s49, s48, {k*8192}")
                a.vm(f"buffer_load_dwordx4 v[{T+4}:{T+7}], v10, s[44:47], s49 offen", "PF")
            fill.append(pf)
        if n == 0:
            a.wait(vm=f"X{ks}", lg=f"F{f}")
        else:
            a.wait(lg=f"F{f}")
        slot = ks % 3
        src = rng('a', FR + (f % NRING)*4)
        for i in range(2):
            r = acc_reg(i, n//2, n % 2) if n < 18 else sacc_reg(i, n-18)
            xsrc = rng('a', XR + slot*8 + i*4)
            c = "0" if ks == 0 else rng('v', r)
            a(f"v_mfma_f32_16x16x32_bf16 {rng('v', r)}, {src}, {xsrc}, {c}")
            if fill: fill.pop(0)()
        while fill: fill.pop(0)()
    stamp(2)
    a("s_barrier")
    stamp(5)
    a(f"v_and_b32 v{T+1}, 15, v0")
    a(f"v_lshrrev_b32 v{T+2}, 4, v0")
    a(f"v_mul_u32_u24 v{T+1}, {SL_STR}, v{T+1}")
    a(f"v_lshl_add_u32 v{T+1}, v{T+2}, 4, v{T+1}")
    a(f"s_mul_i32 s49, s20, {32*SL_STR}")
    a(f"s_add_u32 s49, s49, {SL_OFF}")
    a(f"v_add_u32 v{T+1}, s49, v{T+1}")
    for i in range(2):
        for u in range(3):
            a(f"ds_write_b128 v{T+1}, {rng('v', sacc_reg(i,u))} offset:{i*16*SL_STR + u*64}")
    a.wait(vm="PT")
    a(f"v_cmp_gt_u32 vcc, 2880, v{T}")
    a("s_and_saveexec_b64 s[50:51], vcc")
    a(f"v_add_u32 v{T+2}, {PTL_OFF}, v{T}")
    a(f"ds_write_b128 v{T+2}, v[{T+4}:{T+7}]")
    a("s_mov_b64 exec, s[50:51]")
    a("s_waitcnt lgkmcnt(0)")
    a("s_barrier")
    stamp(6)
    a("s_lshl_b32 s32, s22, 3")
    a("s_add_u32 s32, s32, s20")
    a("s_mul_i32 s32, s32, 180")
    a("s_mul_i32 s33, s21, 9")
    a("s_lshr_b32 s33, s33, 1")
    a("s_add_u32 s32, s32, s33")
    a("s_lshl_b32 s32, s32, 11")
    a(f"s_add_u32 s32, s32, {HF_OFF}")
    a("s_mov_b32 s60, 0xbfb8aa3b")
    a("s_mov_b32 s61, 0xbfb8aa3b")
    a("s_mov_b32 s62, 1.0")
    a("s_mov_b32 s63, 1.0")
    a("s_and_b32 s33, s21, 1")

    def act(i, j, dst):
        g = acc_reg(i, j, 0); u = acc_reg(i, j, 1)
        for r in range(4): a(f"v_cvt_pk_bf16_f32 v{g+r}, 0, v{g+r}")
        for r in (0, 2): a(f"v_pk_mul_f32 v[{T+r}:{T+r+1}], v[{g+r}:{g+r+1}], s[60:61]")
        for r in range(4): a(f"v_exp_f32 v{T+r}, v{T+r}")
        for r in range(4): a(f"v_cvt_pk_bf16_f32 v{u+r}, 0, v{u+r}")
        for r in (0, 2): a(f"v_pk_add_f32 v[{T+r}:{T+r+1}], v[{T+r}:{T+r+1}], s[62:63]")
        for r in range(4): a(f"v_rcp_f32 v{T+r}, v{T+r}")
        a("s_nop 0")
        for r in (0, 2): a(f"v_pk_mul_f32 v[{T+r}:{T+r+1}], v[{g+r}:{g+r+1}], v[{T+r}:{T+r+1}]")
        for r in range(4): a(f"v_cvt_pk_bf16_f32 v{T+r}, 0, v{T+r}")
        for r in (0, 2): a(f"v_pk_mul_f32 v[{T+r}:{T+r+1}], v[{T+r}:{T+r+1}], v[{u+r}:{u+r+1}]")
        a(f"v_cvt_pk_bf16_f32 v{dst}, v{T}, v{T+1}")
        a(f"v_cvt_pk_bf16_f32 v{dst+1}, v{T+2}, v{T+3}")
    def group(gi):
        lo, le = a.newlabel("K1_g_odd"), a.newlabel("K1_g_end")
        a(f"s_add_u32 s35, s32, {gi*2048}")
        a("s_cmp_eq_u32 s33, 1")
        a(f"s_cbranch_scc1 {lo}")
        for odd in (False, True):
            if odd: a.label(lo)
            if not odd: js = [(0,1), (2,3), (4,5), (6,7), (8,)][gi]
            else: js = [(0,), (1,2), (3,4), (5,6), (7,8)][gi]
            for i in range(2):
                d0 = acc_reg(i, js[0], 0)
                if len(js) == 2:
                    act(i, js[0], d0); act(i, js[1], d0+2)
                    a(f"buffer_store_dwordx4 v[{d0}:{d0+3}], v1, s[16:19], s35 offen offset:{i*1024}")
                else:
                    act(i, js[0], d0)
                    a(f"buffer_store_dwordx2 v[{d0}:{d0+1}], v1, s[16:19], s35 offen offset:{i*1024 + (8 if odd else 0)}")
            if not odd: a(f"s_branch {le}")
        a.label(le)
    S = SAC
    a("s_cmp_gt_u32 s20, 4")
    a("s_cbranch_scc1 K1_noscan")
    a(f"v_lshl_add_u32 v{T}, s20, 6, v0")
    a(f"v_cmp_gt_u32 vcc, 288, v{T}")
    a("s_and_saveexec_b64 s[50:51], vcc")
    a(f"v_mul_u32_u24 v{T+1}, 3641, v{T}")
    a(f"v_lshrrev_b32 v{T+1}, 16, v{T+1}")
    a(f"v_mul_u32_u24 v{T+2}, 18, v{T+1}")
    a(f"v_sub_u32 v{T+2}, v{T}, v{T+2}")
    a(f"v_mul_u32_u24 v{T+3}, 160, v{T+2}")
    a(f"v_add_u32 v{T+3}, {PTL_OFF}, v{T+3}")
    a(f"ds_read_b64 v[{T+4}:{T+5}], v{T+3}")
    a(f"v_mul_u32_u24 v{T+6}, {16*SL_STR}, v{T+1}")
    a(f"v_lshl_add_u32 v{T+6}, v{T+2}, 2, v{T+6}")
    a(f"v_add_u32 v{T+6}, {SL_OFF}, v{T+6}")
    a(f"v_mov_b32 v{S+16}, 0")
    a(f"v_mov_b32 v{S+17}, 0")
    for hb in range(2):
        for t in range(8):
            tt = hb*8 + t
            a(f"ds_read_b32 v{S+2*t}, v{T+6} offset:{tt*SL_STR}")
            if t == 6: a("s_waitcnt lgkmcnt(8)")
            a(f"ds_read_b32 v{S+2*t+1}, v{T+6} offset:{tt*SL_STR + 72}")
        a("s_waitcnt lgkmcnt(0)")
        for t in range(8):
            r = S+2*t
            pr = (S+16) if t == 0 else (S+2*t-2)
            if hb == 0 and t == 0: continue
            a(f"v_fma_f32 v{r}, -v{T+5}, v{pr+1}, v{r}")
            a(f"v_fmac_f32 v{r+1}, v{T+5}, v{pr}")
            a(f"v_fmac_f32 v{r}, v{T+4}, v{pr}")
            a(f"v_fmac_f32 v{r+1}, v{T+4}, v{pr+1}")
        for t in range(8):
            tt = hb*8 + t
            if tt == 0: continue
            a(f"ds_write_b32 v{T+6}, v{S+2*t} offset:{tt*SL_STR}")
            a(f"ds_write_b32 v{T+6}, v{S+2*t+1} offset:{tt*SL_STR + 72}")
        if hb == 0:
            a(f"v_mov_b32 v{S+16}, v{S+14}")
            a(f"v_mov_b32 v{S+17}, v{S+15}")
            a("s_waitcnt lgkmcnt(0)")
    a(f"v_lshlrev_b32 v{T+7}, 3, v{T}")
    a(f"v_add_u32 v{T+7}, {EG_OFF}, v{T+7}")
    a(f"ds_write_b64 v{T+7}, v[{S+14}:{S+15}]")
    a("s_mov_b64 exec, s[50:51]")
    a.label("K1_noscan")
    group(0)
    a("s_waitcnt lgkmcnt(0)")
    a("s_barrier")
    stamp(7)
    a("s_cmp_lg_u32 s20, 0")
    a("s_cbranch_scc1 K1_nopfx")
    a("v_cmp_gt_u32 vcc, 18, v0")
    a("s_and_saveexec_b64 s[50:51], vcc")
    a(f"v_mul_u32_u24 v{T+3}, 160, v0")
    a(f"v_add_u32 v{T+3}, {PTL_OFF}, v{T+3}")
    a(f"ds_read_b128 v[{T+4}:{T+7}], v{T+3} offset:16")
    a(f"v_lshlrev_b32 v{T+8}, 3, v0")
    a(f"v_add_u32 v{T+8}, {EG_OFF}, v{T+8}")
    def cfma(d, m, x, e):
        if d != e:
            a(f"v_fma_f32 v{d}, v{m}, v{x}, v{e}")
            a(f"v_fma_f32 v{d+1}, v{m}, v{x+1}, v{e+1}")
        else:
            a(f"v_fmac_f32 v{d}, v{m}, v{x}")
            a(f"v_fmac_f32 v{d+1}, v{m}, v{x+1}")
        a(f"v_fma_f32 v{d}, -v{m+1}, v{x+1}, v{d}")
        a(f"v_fmac_f32 v{d+1}, v{m+1}, v{x}")
    for sg in range(8):
        a(f"ds_read_b64 v[{S+2*sg}:{S+2*sg+1}], v{T+8} offset:{sg*144}")
    a("s_waitcnt lgkmcnt(0)")
    for sg in range(1, 8):
        cfma(S+2*sg, T+4, S+2*sg-2, S+2*sg)
    a(f"v_mov_b32 v{S+16}, v{S+14}")
    a(f"v_mov_b32 v{S+17}, v{S+15}")
    for sg in range(8):
        a(f"ds_read_b64 v[{S+2*sg}:{S+2*sg+1}], v{T+8} offset:{(8+sg)*144}")
    a("s_waitcnt lgkmcnt(0)")
    cfma(S, T+4, S+16, S)
    for sg in range(1, 8):
        cfma(S+2*sg, T+4, S+2*sg-2, S+2*sg)
    a(f"s_mul_i32 s52, s22, {576*8}")
    a(f"s_add_u32 s52, s52, {AGG_OFF}")
    a(f"buffer_store_dwordx2 v[{S+14}:{S+15}], v{T+9}, s[16:19], s52 offen sc0 sc1")
    a("s_mov_b64 exec, s[50:51]")
    a.label("K1_nopfx")
    group(1)
    group(2)
    a("s_cmp_lg_u32 s20, 0")
    a("s_cbranch_scc1 K1_nopfx2")
    a(f"v_mov_b32 v{S+16}, 0")
    a(f"v_mov_b32 v{S+17}, 0")
    a("s_cmp_eq_u32 s22, 0")
    a("s_cbranch_scc1 K1_nogather")
    a("v_cmp_gt_u32 vcc, 18, v0")
    a("s_and_saveexec_b64 s[50:51], vcc")
    a.label("K1_poll")
    a(f"s_mov_b32 s52, {AGG_OFF}")
    for m in range(7):
        a(f"v_mov_b32 v{S+2*m}, 0")
        a(f"v_mov_b32 v{S+2*m+1}, 0")
    for m in range(7):
        a(f"s_cmp_le_u32 s22, {m}")
        a("s_cbranch_scc1 K1_gld")
        a(f"buffer_load_dwordx2 v[{S+2*m}:{S+2*m+1}], v{T+9}, s[16:19], s52 offen sc0 sc1")
        a(f"s_add_u32 s52, s52, {576*8}")
    a.label("K1_gld")
    a("s_waitcnt vmcnt(0)")
    a(f"v_max_u32 v{T+10}, v{S}, v{S+1}")
    for m in range(1, 7):
        a(f"v_max3_u32 v{T+10}, v{S+2*m}, v{S+2*m+1}, v{T+10}")
    a(f"v_cmp_eq_u32 vcc, -1, v{T+10}")
    a("s_nop 4")
    a("s_cbranch_vccz K1_polled")
    a("s_sleep 1")
    a("s_branch K1_poll")
    a.label("K1_polled")
    for m in range(7):
        a(f"s_cmp_le_u32 s22, {m}")
        a("s_cbranch_scc1 K1_gdn")
        cfma(S+2*m, T+6, S+16, S+2*m)
        a(f"v_mov_b32 v{S+16}, v{S+2*m}")
        a(f"v_mov_b32 v{S+17}, v{S+2*m+1}")
    a.label("K1_gdn")
    a("s_mov_b64 exec, s[50:51]")
    a.label("K1_nogather")
    a("v_cmp_gt_u32 vcc, 18, v0")
    a("s_and_saveexec_b64 s[50:51], vcc")
    for hb in range(2):
        for sg in range(8):
            a(f"ds_read_b64 v[{S+2*sg}:{S+2*sg+1}], v{T+8} offset:{(hb*8+sg)*144}")
        a("s_waitcnt lgkmcnt(0)")
        for sg in range(8):
            prev = (S+16) if sg == 0 else (S+2*sg-2)
            a(f"ds_write_b64 v{T+8}, v[{prev}:{prev+1}] offset:{(hb*8+sg)*144}")
            cfma(S+2*sg, T+4, prev, S+2*sg)
        a(f"v_mov_b32 v{S+16}, v{S+14}")
        a(f"v_mov_b32 v{S+17}, v{S+15}")
        a("s_waitcnt lgkmcnt(0)")
    a("s_mov_b64 exec, s[50:51]")
    a.label("K1_nopfx2")
    group(3)
    group(4)
    a("s_lshr_b32 s50, s20, 1")
    a("s_and_b32 s51, s20, 1")
    a("s_lshl_b32 s52, s50, 6")
    a(f"v_add_u32 v{T}, s52, v0")
    a(f"v_mul_u32_u24 v{T+1}, {SL_STR}, v{T}")
    a("s_lshl_b32 s53, s51, 3")
    a(f"s_add_u32 s54, s53, {SL_OFF}")
    a(f"v_add_u32 v{T+1}, s54, v{T+1}")
    a(f"v_and_b32 v{T+2}, 15, v0")
    a(f"v_lshlrev_b32 v{T+2}, 3, v{T+2}")
    a("s_mul_i32 s54, s51, 320")
    a(f"s_add_u32 s54, s54, {PTL_OFF}")
    a(f"v_add_u32 v{T+2}, s54, v{T+2}")
    a(f"v_mov_b32 v{T+4}, s54")
    a(f"v_lshrrev_b32 v{T+3}, 4, v{T}")
    a(f"v_mul_u32_u24 v{T+3}, 144, v{T+3}")
    a("s_lshl_b32 s55, s51, 4")
    a(f"s_add_u32 s55, s55, {EG_OFF}")
    a(f"v_add_u32 v{T+3}, s55, v{T+3}")
    a(f"v_lshrrev_b32 v{T+5}, 5, v0")
    a(f"v_mul_u32_u24 v{T+5}, {180*2048}, v{T+5}")
    a(f"v_bfe_u32 v{T+6}, v0, 4, 1")
    a(f"v_lshl_add_u32 v{T+5}, v{T+6}, 10, v{T+5}")
    a(f"v_and_b32 v{T+6}, 15, v0")
    a(f"v_lshl_add_u32 v{T+5}, v{T+6}, 4, v{T+5}")
    a("s_lshl_b32 s56, s22, 3")
    a("s_lshl_b32 s57, s50, 1")
    a("s_add_u32 s56, s56, s57")
    a("s_mul_i32 s56, s56, 180")
    a("s_add_u32 s56, s56, 144")
    a("s_lshl_b32 s56, s56, 11")
    a(f"s_add_u32 s56, s56, {HF_OFF}")
    a("s_mul_i32 s55, s21, 9")
    a("s_add_u32 s55, s55, s51")
    def Rb(it): return ACC + 16*it
    for it in range(5):
        R = Rb(it)
        a(f"ds_read_b64 v[{R}:{R+1}], v{T+1} offset:{16*it}")
        a(f"ds_read_b64 v[{R+2}:{R+3}], v{T+1} offset:{16*it+72}")
        a(f"ds_read_b64 v[{R+4}:{R+5}], v{T+2} offset:{640*it+32}")
        a(f"ds_read_b64 v[{R+6}:{R+7}], v{T+2} offset:{640*it+192}")
        a(f"ds_read_b64 v[{R+12}:{R+13}], v{T+4} offset:{640*it+8}")
        a(f"ds_read_b64 v[{R+14}:{R+15}], v{T+4} offset:{640*it+168}")
        if it % 2 == 1: a("s_waitcnt lgkmcnt(0)")
    a("s_waitcnt lgkmcnt(0)")
    stamp(8)
    a("s_barrier")
    stamp(9)
    for it in range(5):
        R = Rb(it)
        a(f"ds_read_b128 v[{R+8}:{R+11}], v{T+3} offset:{32*it}")
    for it in range(5):
        R = Rb(it)
        if it == 4:
            a("s_cmp_eq_u32 s51, 1")
            a("s_cbranch_scc1 K1_fin_end")
        a(f"s_add_u32 s57, s55, {2*it}")
        a("s_lshr_b32 s58, s57, 3")
        a("s_lshl_b32 s58, s58, 11")
        a("s_add_u32 s58, s58, s56")
        a("s_and_b32 s59, s57, 3")
        a("s_lshl_b32 s59, s59, 8")
        a("s_add_u32 s58, s58, s59")
        a("s_bfe_u32 s59, s57, 0x10002")
        a("s_lshl_b32 s59, s59, 3")
        a("s_add_u32 s58, s58, s59")
        a(f"s_waitcnt lgkmcnt({4-it})")
        for e in range(2):
            gr, gi = R+e, R+2+e
            pr, pi = R+4+2*e, R+5+2*e
            fr, fi = R+8+2*e, R+9+2*e
            cr, ci = R+12+2*e, R+13+2*e
            a(f"v_fmac_f32 v{gr}, v{pr}, v{fr}")
            a(f"v_fmac_f32 v{gi}, v{pr}, v{fi}")
            a(f"v_fma_f32 v{gr}, -v{pi}, v{fi}, v{gr}")
            a(f"v_fmac_f32 v{gi}, v{pi}, v{fr}")
            a(f"v_mul_f32 v{pr}, v{cr}, v{gr}")
            a(f"v_mul_f32 v{pi}, v{cr}, v{gi}")
            a(f"v_fma_f32 v{pr}, -v{ci}, v{gi}, v{pr}")
            a(f"v_fmac_f32 v{pi}, v{ci}, v{gr}")
        a(f"v_cvt_pk_bf16_f32 v{R}, v{R+4}, v{R+5}")
        a(f"v_cvt_pk_bf16_f32 v{R+1}, v{R+6}, v{R+7}")
        a(f"buffer_store_dwordx2 v[{R}:{R+1}], v{T+5}, s[16:19], s58 offen")
    a.label("K1_fin_end")
    stamp(3)
    if stamps:
        a("s_waitcnt vmcnt(0)")
        stamp(4)
        a("s_waitcnt lgkmcnt(0)")
        for n in range(1, 10):
            a(f"s_sub_u32 s{60+n}, s{80+2*n}, s80")
            a(f"v_mov_b32 v{T+n}, s{60+n}")
        a(f"v_mov_b32 v{T}, s80")
        a("s_lshl_b32 s36, s2, 3")
        a("s_add_u32 s36, s36, s20")
        a("s_lshl_b32 s36, s36, 6")
        a("s_add_u32 s36, s36, 0xF000000")
        a(f"v_mov_b32 v{T+12}, 0")
        a(f"buffer_store_dwordx4 v[{T}:{T+3}], v{T+12}, s[16:19], s36 offen")
        a(f"buffer_store_dwordx4 v[{T+4}:{T+7}], v{T+12}, s[16:19], s36 offen offset:16")
        a(f"buffer_store_dwordx2 v[{T+8}:{T+9}], v{T+12}, s[16:19], s36 offen offset:32")
        a("s_waitcnt vmcnt(0)")
    a.label("K1_done")
    a("s_endpgm")
    return a.text(), kernel_desc(name, NARCH+NACC, NARCH)
```

```python
from common import *
import sys
ACC = 16
TMP = 88
HPD = 8
HSL = HPD + 1
HR = 96
WPD = 6
WSL = 8
WR = 168
NARCH = 200
NACC = 32
NS = 5
STG = 27648
K2_LDS = NS*STG
def acc_reg(i, j): return ACC + (j*2+i)*4
def rng(t, b, n=4): return f"{t}[{b}:{b+n-1}]"

def setup(a):
    T = TMP
    a("v_lshlrev_b32 v1, 4, v0")
    a("s_and_b32 s23, s2, 7")
    a("s_lshr_b32 s24, s2, 3")
    a("s_and_b32 s25, s23, 3")
    a("s_lshr_b32 s23, s23, 2")
    a("s_lshl_b32 s23, s23, 3")
    a("s_lshr_b32 s22, s24, 2")
    a("s_add_u32 s22, s22, s23")
    a("s_and_b32 s21, s24, 3")
    a("s_mul_i32 s23, s20, 24")
    a("s_mul_i32 s24, s21, 288")
    a("s_movk_i32 s26, 3641")
    a("s_movk_i32 s27, 1152")
    for q in range(7):
        if q: a(f"v_add_u32 v{T}, {q*64}, v0")
        else: a(f"v_mov_b32 v{T}, v0")
        a(f"v_mul_lo_u32 v{T+1}, v{T}, s26")
        a(f"v_lshrrev_b32 v{T+1}, 16, v{T+1}")
        a(f"v_mul_u32_u24 v{T+2}, 18, v{T+1}")
        a(f"v_sub_u32 v{T+2}, v{T}, v{T+2}")
        a(f"v_add_u32 v{T+1}, s23, v{T+1}")
        a(f"v_mul_lo_u32 v{T+1}, v{T+1}, s27")
        a(f"v_lshl_add_u32 v{T+1}, v{T+2}, 4, v{T+1}")
        a(f"v_add_u32 v{2+q}, s24, v{T+1}")
    a("s_mul_i32 s27, s20, 6912")
    a("s_lshl_b32 s28, s22, 2")
    a("s_add_u32 s28, s28, s20")
    a("s_mul_i32 s28, s28, 180")
    a("s_mul_i32 s29, s25, 48")
    a("s_add_u32 s28, s28, s29")
    a("s_lshl_b32 s28, s28, 11")
    a(f"s_add_u32 s28, s28, {HF_OFF}")
    srd(a, 16, 8, WS_BYTES)
    a(f"s_add_u32 s36, s8, {CST_OFF}")
    a("s_addc_u32 s37, s9, 0")
    a("s_cmp_lt_u32 s25, 3")
    a("s_cselect_b32 s40, s4, s36")
    a("s_cselect_b32 s41, s5, s37")
    a(f"s_mov_b32 s38, {1152*576*2}")
    a(f"s_cselect_b32 s42, {4608*576*2}, s38")
    a("s_mov_b32 s43, 0x00020000")
    a(f"s_mul_i32 s29, s25, {48*32*1152}")
    a("s_cselect_b32 s29, s29, 0")
    a("s_and_b32 s41, s41, 0xffff")
    a(f"v_lshrrev_b32 v{T}, 2, v0")
    a(f"v_mul_u32_u24 v{T}, 288, v{T}")
    a(f"v_and_b32 v{T+1}, 3, v0")
    a(f"v_lshl_add_u32 v9, v{T+1}, 3, v{T}")
    for b in range(1, NS):
        a(f"v_add_u32 v{9+b}, {b*STG}, v9")

def dma(a, stage, q):
    b = stage % NS
    if q == 0: a(f"s_add_u32 s30, s29, {stage*96*1152}")
    a(f"s_add_u32 m0, s27, {b*STG + q*1024}")
    if q == 6: a("s_mov_b32 exec_hi, 0xffff")
    else: a("s_nop 0")
    a.vm(f"buffer_load_dwordx4 v{2+q}, s[40:43], s30 offen lds", f"D{stage}")
    if q == 6: a("s_mov_b32 exec_hi, -1")

def body(a, nks, stamp, hflag="", pre_dma_done=False):
    nstg = nks//3
    def hload(ks, i):
        slot = ks % HSL
        if i == 0: a(f"s_add_u32 s33, s28, {ks*2048}")
        a.vm(f"buffer_load_dwordx4 {rng('v', HR + slot*8 + i*4)}, v1, s[16:19], s33 offen offset:{i*1024} {hflag}", f"H{ks}")
    def wread(sig, half):
        ks, j = divmod(sig, 9)
        stage, sub = divmod(ks, 3)
        b = stage % NS
        off = sub*9216 + half*4608 + j*32
        dst = WR + (sig % WSL)*4 + half*2
        a.lg(f"ds_read_b64_tr_b16 {rng('v', dst, 2)}, v{9+b} offset:{off}", f"W{sig}")
    if not pre_dma_done:
        for q in range(7): dma(a, 0, q)
    for ks in range(2):
        for i in range(2): hload(ks, i)
    pend = []
    if not pre_dma_done:
        pend = [(1, q) for q in range(7)] + [(2, q) for q in range(7)] + [(3, q) for q in range(7)]
        for _ in range(7):
            st, q = pend.pop(0); dma(a, st, q)
    for ks in range(2, HPD):
        for i in range(2): hload(ks, i)
    a.wait(vm="D0")
    a("s_barrier")
    stamp(1)
    NJ = nks*9
    for sig in range(WPD):
        for h in range(2): wread(sig, h)
    for sig in range(NJ):
        ks, j = divmod(sig, 9)
        fill = []
        if (sig+WPD) % 27 == 0 and sig+WPD < NJ:
            s1 = (sig+WPD)//27
            assert not any(st <= s1 for st, q in pend)
            a.wait(vm=f"D{s1}")
            a("s_barrier")
            if s1+3 < nstg:
                pend += [(s1+3, q) for q in range(7)]
        if sig+WPD < NJ:
            for h in range(2):
                fill.append(lambda h=h: wread(sig+WPD, h))
        if j == 0 and ks+HPD < nks:
            for i in range(2):
                fill.append(lambda i=i: hload(ks+HPD, i))
        elif pend and (j % 2 == 1 or len(pend) > 7):
            st, q = pend.pop(0)
            fill.append(lambda st=st, q=q: dma(a, st, q))
        if j == 0:
            a.wait(vm=f"H{ks}", lg=f"W{sig}")
        else:
            a.wait(lg=f"W{sig}")
        slot = ks % HSL
        for i in range(2):
            r = acc_reg(i, j)
            wsrc = rng('v', WR + (sig % WSL)*4)
            hsrc = rng('v', HR + slot*8 + i*4)
            c = "0" if ks == 0 else rng('v', r)
            a(f"v_mfma_f32_16x16x32_bf16 {rng('v', r)}, {wsrc}, {hsrc}, {c}")
            if fill: fill.pop(0)()
        while fill: fill.pop(0)()

def tail(a, stamp):
    a("s_load_dwordx2 s[4:5], s[0:1], 0")
    a("s_load_dwordx2 s[6:7], s[0:1], 64")
    a("s_load_dwordx2 s[10:11], s[0:1], 104")
    a("s_lshl_b32 s26, s22, 2")
    a("s_add_u32 s26, s26, s21")
    a("s_lshl_b32 s27, s26, 2")
    a("s_add_u32 s28, s27, s25")
    a("s_lshl_b32 s28, s28, 2")
    a("s_add_u32 s28, s28, s20")
    a(f"s_mul_i32 s28, s28, {18*1024}")
    a(f"s_add_u32 s28, s28, {PART_OFF}")
    a("v_and_b32 v2, 15, v0")
    a("v_lshrrev_b32 v3, 4, v0")
    a("v_mul_u32_u24 v4, 1152, v2")
    a("v_lshl_add_u32 v4, v3, 3, v4")
    a("v_lshlrev_b32 v5, 1, v4")
    a("v_lshrrev_b32 v6, 1, v3")
    a("v_lshlrev_b32 v6, 8, v6")
    a("v_lshl_add_u32 v6, v2, 4, v6")
    a("v_and_b32 v7, 1, v3")
    a("v_lshl_add_u32 v6, v7, 3, v6")
    a("v_lshlrev_b32 v7, 3, v3")
    a("s_waitcnt lgkmcnt(0)")
    srd(a, 12, 4, 2048*576*2)
    srd(a, 36, 6, 576*2)
    srd(a, 40, 10, 2048*576*4)
    for it in range(5):
        if it == 4:
            a("s_cmp_gt_u32 s20, 1")
            a("s_cbranch_scc1 K2_l1")
        a(f"s_add_u32 s44, s20, {4*it}")
        a("s_cmp_ge_u32 s44, 9")
        a("s_cselect_b32 s45, 1, 0")
        a("s_mul_i32 s46, s45, 9")
        a("s_sub_u32 s46, s44, s46")
        a("s_lshl_b32 s47, s22, 3")
        a("s_lshl_b32 s48, s25, 1")
        a("s_add_u32 s47, s47, s48")
        a("s_add_u32 s47, s47, s45")
        a("s_mul_i32 s48, s21, 9")
        a("s_add_u32 s48, s48, s46")
        a("s_mul_i32 s49, s47, 18432")
        a("s_lshl_b32 s50, s48, 5")
        a("s_add_u32 s49, s49, s50")
        a(f"s_mov_b32 s{52+it}, s49")
        a(f"buffer_load_dwordx2 a[{6*it}:{6*it+1}], v4, s[12:15], s49 offen")
        a("s_lshr_b32 s51, s47, 1")
        a("s_mul_i32 s51, s51, 18")
        a("s_lshr_b32 s49, s48, 1")
        a("s_add_u32 s51, s51, s49")
        a("s_lshl_b32 s51, s51, 11")
        a("s_and_b32 s49, s47, 1")
        a("s_lshl_b32 s49, s49, 10")
        a("s_add_u32 s51, s51, s49")
        a("s_and_b32 s49, s48, 1")
        a("s_lshl_b32 s49, s49, 9")
        a("s_add_u32 s51, s51, s49")
        if XNF_OFF: a(f"s_add_u32 s51, s51, {XNF_OFF}")
        a(f"buffer_load_dwordx2 a[{6*it+2}:{6*it+3}], v6, s[16:19], s51 offen")
        a(f"buffer_load_dwordx2 a[{6*it+4}:{6*it+5}], v7, s[36:39], s50 offen")
    a.label("K2_l1")
    a("s_barrier")
    stamp(5)
    a("s_cmp_eq_u32 s20, s25")
    a("s_cbranch_scc1 K2_own")
    for f in range(18):
        i, j = divmod(f, 9)
        if f % 4 == 0: a(f"s_add_u32 s35, s28, {f*1024}")
        a(f"buffer_store_dwordx4 {rng('v', acc_reg(i, j))}, v1, s[16:19], s35 offen offset:{(f%4)*1024} sc1")
    a("s_branch K2_pub")
    a.label("K2_own")
    for f in range(18):
        i, j = divmod(f, 9)
        a(f"ds_write_b128 v1, {rng('v', acc_reg(i, j))} offset:{f*1024}")
    a.label("K2_pub")
    a("s_waitcnt vmcnt(0) lgkmcnt(0)")
    stamp(6)
    a("s_barrier")
    a("s_lshl_b32 s29, s27, 2")
    a(f"s_add_u32 s29, s29, {FLAG2_OFF}")
    a("v_lshlrev_b32 v88, 2, v0")
    a("s_cmp_lg_u32 s20, 0")
    a("s_cbranch_scc1 K2_noflag")
    a("s_mov_b64 exec, 1")
    a("v_mov_b32 v89, 1")
    a("s_lshl_b32 s44, s25, 2")
    a("s_add_u32 s44, s44, s29")
    a("buffer_store_dword v89, v88, s[16:19], s44 offen sc1")
    a.label("K2_noflag")
    a("s_mov_b64 exec, 15")
    a.label("K2_poll")
    a("buffer_load_dword v89, v88, s[16:19], s29 offen sc1")
    a("s_waitcnt vmcnt(0)")
    a("v_cmp_eq_u32 vcc, 0, v89")
    a("s_nop 4")
    a("s_cbranch_vccz K2_polled")
    a("s_sleep 1")
    a("s_branch K2_poll")
    a.label("K2_polled")
    a("s_mov_b64 exec, -1")
    stamp(3)
    P0 = 96
    a("s_lshl_b32 s44, s20, 10")
    a("v_add_u32 v88, s44, v1")
    for src in range(4):
        lo, le = a.newlabel("K2_so"), a.newlabel("K2_se")
        a(f"s_cmp_eq_u32 s25, {src}")
        a(f"s_cbranch_scc1 {lo}")
        a(f"s_add_u32 s44, s27, {src}")
        a("s_lshl_b32 s44, s44, 2")
        a("s_add_u32 s44, s44, s25")
        a("s_mul_i32 s44, s44, 18")
        a("s_add_u32 s44, s44, s20")
        a("s_lshl_b32 s44, s44, 10")
        a(f"s_add_u32 s44, s44, {PART_OFF}")
        for it in range(5):
            if it == 4:
                a("s_cmp_gt_u32 s20, 1")
                a(f"s_cbranch_scc1 {le}")
            d = P0 + it*16 + src*4
            a(f"buffer_load_dwordx4 v[{d}:{d+3}], v1, s[16:19], s44 offen sc1")
            a("s_add_u32 s44, s44, 4096")
        a(f"s_branch {le}")
        a.label(lo)
        for it in range(5):
            d = P0 + it*16 + src*4
            a(f"ds_read_b128 v[{d}:{d+3}], v88 offset:{4096*it}")
        a.label(le)
    a("s_waitcnt vmcnt(0) lgkmcnt(0)")
    stamp(8)
    for it in range(5):
        if it == 4:
            a("s_cmp_gt_u32 s20, 1")
            a("s_cbranch_scc1 K2_l3")
        P = P0 + it*16
        X = 16 + it*12
        for r in range(6): a(f"v_accvgpr_read_b32 v{88+r}, a{6*it+r}")
        for r in range(4): a(f"v_add_f32 v{P+r}, v{P+r}, v{P+4+r}")
        for (src, dst) in ((88, X), (90, X+4), (92, X+8)):
            a(f"v_lshlrev_b32 v{dst}, 16, v{src}")
            a(f"v_and_b32 v{dst+1}, 0xffff0000, v{src}")
            a(f"v_lshlrev_b32 v{dst+2}, 16, v{src+1}")
            a(f"v_and_b32 v{dst+3}, 0xffff0000, v{src+1}")
        for r in range(4): a(f"v_add_f32 v{P+r}, v{P+r}, v{P+8+r}")
        for r in range(4): a(f"v_mul_f32 v{X+4+r}, v{X+4+r}, v{X+8+r}")
        for r in range(4): a(f"v_cvt_pk_bf16_f32 v{P+r}, 0, v{P+r}")
        for r in range(4): a(f"v_cvt_pk_bf16_f32 v{X+4+r}, 0, v{X+4+r}")
        for r in range(4): a(f"v_add_f32 v{P+12+r}, v{P+12+r}, v{X+4+r}")
        for r in range(4): a(f"v_add_f32 v{P+12+r}, v{X+r}, v{P+12+r}")
        for r in range(4): a(f"v_add_f32 v{P+12+r}, v{P+12+r}, v{P+r}")
        a(f"s_lshl_b32 s44, s{52+it}, 1")
        a(f"buffer_store_dwordx4 v[{P+12}:{P+15}], v5, s[40:43], s44 offen")
    a.label("K2_l3")

def stamps_out(a):
    a("s_waitcnt vmcnt(0)")
    a("s_memrealtime s[78:79]")
    a("s_waitcnt lgkmcnt(0)")
    for n in range(1, 9):
        a(f"s_sub_u32 s{44+n}, s{70+2*n}, s70")
        a(f"v_mov_b32 v{16+n}, s{44+n}")
    a("v_mov_b32 v16, s70")
    a("s_lshl_b32 s36, s2, 2")
    a("s_add_u32 s36, s36, s20")
    a("s_lshl_b32 s36, s36, 6")
    a("s_add_u32 s36, s36, 0xF100000")
    a("v_mov_b32 v28, 0")
    a("buffer_store_dwordx4 v[16:19], v28, s[16:19], s36 offen")
    a("buffer_store_dwordx4 v[20:23], v28, s[16:19], s36 offen offset:16")
    a("buffer_store_dword v24, v28, s[16:19], s36 offen offset:32")
    a("s_waitcnt vmcnt(0)")

def gen_k2(name="k2_kernel", stamps=False):
    a = Asm()
    def stamp(n):
        if stamps: a(f"s_memrealtime s[{70+2*n}:{71+2*n}]")
    a.raw(kernel_header(name))
    a("s_cmp_ge_u32 s2, 256")
    a("s_cbranch_scc1 K2_done")
    stamp(0)
    a("s_load_dwordx2 s[4:5], s[0:1], 96")
    a("s_load_dwordx2 s[8:9], s[0:1], 120")
    a("v_lshrrev_b32 v15, 6, v0")
    a("v_and_b32 v0, 63, v0")
    a("v_readfirstlane_b32 s20, v15")
    a("s_waitcnt lgkmcnt(0)")
    setup(a)
    a("s_cmp_eq_u32 s25, 3")
    a("s_cbranch_scc1 K2_ssm")
    body(a, 48, stamp)
    a("s_branch K2_tail")
    a.label("K2_ssm")
    a.vmq = []; a.lgq = []
    body(a, 36, stamp)
    a.label("K2_tail")
    stamp(2)
    a("s_nop 7")
    tail(a, stamp)
    if stamps: stamps_out(a)
    a.label("K2_done")
    a("s_endpgm")
    return a.text(), kernel_desc(name, NARCH+NACC, NARCH)
```

```python
import sys
from common import *
import k0, k1, k2, k3
def build(path, stamps=False):
    hdr_src = open("parallel_sum__ssm_conv_s5__swiglu_ffn__prompt.s.ref").read().split("\n")
    head = []
    for l in hdr_src:
        if l.startswith("; Override") or l.startswith("; grid=ceil") or "@launch" in l: continue
        if not l.startswith(";"): break
        head.append(l)
    head.append(f"; @launch kernel=k0_kernel grid=(256,1,1) block=(256,1,1) lds=0")
    head.append(f"; @launch kernel=k1_kernel grid=(256,1,1) block=(512,1,1) lds={k1.K1_LDS}")
    head.append(f"; @launch kernel=k2_kernel grid=(256,1,1) block=(256,1,1) lds={k2.K2_LDS}")
    out = "\n".join(head) + "\n.amdgcn_target \"amdgcn-amd-amdhsa--gfx950\"\n"
    parts = [k0.gen_k0(stamps=stamps), k1.gen_k1(stamps=stamps), k2.gen_k2(stamps=stamps)]
    for b, d in parts: out += b
    for b, d in parts: out += d
    open(path, "w").write(out)
if __name__ == "__main__":
    build(sys.argv[1] if len(sys.argv) > 1 else "parallel_sum__ssm_conv_s5__swiglu_ffn__prompt.s", stamps=("stamps" in sys.argv))
```

```python
from common import *
import sys
ACC = 16
TMP = 88
HPD = 8
HSL = HPD + 1
HR = 96
WPD = 6
WSL = 8
WR = 168
NARCH = 200
NACC = 32
NS = 5
STG = 27648
K2_LDS = NS*STG
def acc_reg(i, j): return ACC + (j*2+i)*4
def rng(t, b, n=4): return f"{t}[{b}:{b+n-1}]"

def setup(a):
    T = TMP
    a("v_lshlrev_b32 v1, 4, v0")
    a("s_and_b32 s23, s2, 7")
    a("s_lshr_b32 s24, s2, 3")
    a("s_and_b32 s25, s23, 3")
    a("s_lshr_b32 s23, s23, 2")
    a("s_lshl_b32 s23, s23, 3")
    a("s_lshr_b32 s22, s24, 2")
    a("s_add_u32 s22, s22, s23")
    a("s_and_b32 s21, s24, 3")
    a("s_mul_i32 s23, s20, 24")
    a("s_mul_i32 s24, s21, 288")
    a("s_movk_i32 s26, 3641")
    a("s_movk_i32 s27, 1152")
    for q in range(7):
        if q: a(f"v_add_u32 v{T}, {q*64}, v0")
        else: a(f"v_mov_b32 v{T}, v0")
        a(f"v_mul_lo_u32 v{T+1}, v{T}, s26")
        a(f"v_lshrrev_b32 v{T+1}, 16, v{T+1}")
        a(f"v_mul_u32_u24 v{T+2}, 18, v{T+1}")
        a(f"v_sub_u32 v{T+2}, v{T}, v{T+2}")
        a(f"v_add_u32 v{T+1}, s23, v{T+1}")
        a(f"v_mul_lo_u32 v{T+1}, v{T+1}, s27")
        a(f"v_lshl_add_u32 v{T+1}, v{T+2}, 4, v{T+1}")
        a(f"v_add_u32 v{2+q}, s24, v{T+1}")
    a("s_mul_i32 s27, s20, 6912")
    a("s_lshl_b32 s28, s22, 2")
    a("s_add_u32 s28, s28, s20")
    a("s_mul_i32 s28, s28, 180")
    a("s_mul_i32 s29, s25, 48")
    a("s_add_u32 s28, s28, s29")
    a("s_lshl_b32 s28, s28, 11")
    a(f"s_add_u32 s28, s28, {HF_OFF}")
    srd(a, 16, 8, WS_BYTES)
    a(f"s_add_u32 s36, s8, {CST_OFF}")
    a("s_addc_u32 s37, s9, 0")
    a("s_cmp_lt_u32 s25, 3")
    a("s_cselect_b32 s40, s4, s36")
    a("s_cselect_b32 s41, s5, s37")
    a(f"s_mov_b32 s38, {1152*576*2}")
    a(f"s_cselect_b32 s42, {4608*576*2}, s38")
    a("s_mov_b32 s43, 0x00020000")
    a(f"s_mul_i32 s29, s25, {48*32*1152}")
    a("s_cselect_b32 s29, s29, 0")
    a("s_and_b32 s41, s41, 0xffff")
    a(f"v_lshrrev_b32 v{T}, 2, v0")
    a(f"v_mul_u32_u24 v{T}, 288, v{T}")
    a(f"v_and_b32 v{T+1}, 3, v0")
    a(f"v_lshl_add_u32 v9, v{T+1}, 3, v{T}")
    for b in range(1, NS):
        a(f"v_add_u32 v{9+b}, {b*STG}, v9")

def dma(a, stage, q):
    b = stage % NS
    if q == 0: a(f"s_add_u32 s30, s29, {stage*96*1152}")
    a(f"s_add_u32 m0, s27, {b*STG + q*1024}")
    if q == 6: a("s_mov_b32 exec_hi, 0xffff")
    else: a("s_nop 0")
    a.vm(f"buffer_load_dwordx4 v{2+q}, s[40:43], s30 offen lds", f"D{stage}")
    if q == 6: a("s_mov_b32 exec_hi, -1")

def body(a, nks, stamp, hflag="", pre_dma_done=False):
    nstg = nks//3
    def hload(ks, i):
        slot = ks % HSL
        if i == 0: a(f"s_add_u32 s33, s28, {ks*2048}")
        a.vm(f"buffer_load_dwordx4 {rng('v', HR + slot*8 + i*4)}, v1, s[16:19], s33 offen offset:{i*1024} {hflag}", f"H{ks}")
    def wread(sig, half):
        ks, j = divmod(sig, 9)
        stage, sub = divmod(ks, 3)
        b = stage % NS
        off = sub*9216 + half*4608 + j*32
        dst = WR + (sig % WSL)*4 + half*2
        a.lg(f"ds_read_b64_tr_b16 {rng('v', dst, 2)}, v{9+b} offset:{off}", f"W{sig}")
    if not pre_dma_done:
        for q in range(7): dma(a, 0, q)
    for ks in range(2):
        for i in range(2): hload(ks, i)
    pend = []
    if not pre_dma_done:
        pend = [(1, q) for q in range(7)] + [(2, q) for q in range(7)] + [(3, q) for q in range(7)]
        for _ in range(7):
            st, q = pend.pop(0); dma(a, st, q)
    for ks in range(2, HPD):
        for i in range(2): hload(ks, i)
    a.wait(vm="D0")
    a("s_barrier")
    stamp(1)
    NJ = nks*9
    for sig in range(WPD):
        for h in range(2): wread(sig, h)
    for sig in range(NJ):
        ks, j = divmod(sig, 9)
        fill = []
        if (sig+WPD) % 27 == 0 and sig+WPD < NJ:
            s1 = (sig+WPD)//27
            assert not any(st <= s1 for st, q in pend)
            a.wait(vm=f"D{s1}")
            a("s_barrier")
            if s1+3 < nstg:
                pend += [(s1+3, q) for q in range(7)]
        if sig+WPD < NJ:
            for h in range(2):
                fill.append(lambda h=h: wread(sig+WPD, h))
        if j == 0 and ks+HPD < nks:
            for i in range(2):
                fill.append(lambda i=i: hload(ks+HPD, i))
        elif pend and (j % 2 == 1 or len(pend) > 7):
            st, q = pend.pop(0)
            fill.append(lambda st=st, q=q: dma(a, st, q))
        if j == 0:
            a.wait(vm=f"H{ks}", lg=f"W{sig}")
        else:
            a.wait(lg=f"W{sig}")
        slot = ks % HSL
        for i in range(2):
            r = acc_reg(i, j)
            wsrc = rng('v', WR + (sig % WSL)*4)
            hsrc = rng('v', HR + slot*8 + i*4)
            c = "0" if ks == 0 else rng('v', r)
            a(f"v_mfma_f32_16x16x32_bf16 {rng('v', r)}, {wsrc}, {hsrc}, {c}")
            if fill: fill.pop(0)()
        while fill: fill.pop(0)()

def tail(a, stamp, mega=False):
    a("s_load_dwordx2 s[4:5], s[0:1], 0")
    a("s_load_dwordx2 s[6:7], s[0:1], 64")
    a("s_load_dwordx2 s[10:11], s[0:1], 104")
    a("s_lshl_b32 s26, s22, 2")
    a("s_add_u32 s26, s26, s21")
    a("s_lshl_b32 s27, s26, 2")
    a("s_add_u32 s28, s27, s25")
    a("s_lshl_b32 s28, s28, 2")
    a("s_add_u32 s28, s28, s20")
    a(f"s_mul_i32 s28, s28, {18*1024}")
    a(f"s_add_u32 s28, s28, {PART_OFF}")
    a("v_and_b32 v2, 15, v0")
    a("v_lshrrev_b32 v3, 4, v0")
    a("v_mul_u32_u24 v4, 1152, v2")
    a("v_lshl_add_u32 v4, v3, 3, v4")
    a("v_lshlrev_b32 v5, 1, v4")
    a("v_lshrrev_b32 v6, 1, v3")
    a("v_lshlrev_b32 v6, 8, v6")
    a("v_lshl_add_u32 v6, v2, 4, v6")
    a("v_and_b32 v7, 1, v3")
    a("v_lshl_add_u32 v6, v7, 3, v6")
    a("v_lshlrev_b32 v7, 3, v3")
    a("s_waitcnt lgkmcnt(0)")
    srd(a, 12, 4, 2048*576*2)
    srd(a, 36, 6, 576*2)
    srd(a, 40, 10, 2048*576*4)
    for it in range(5):
        if it == 4:
            a("s_cmp_gt_u32 s20, 1")
            a("s_cbranch_scc1 K2_l1")
        a(f"s_add_u32 s44, s20, {4*it}")
        a("s_cmp_ge_u32 s44, 9")
        a("s_cselect_b32 s45, 1, 0")
        a("s_mul_i32 s46, s45, 9")
        a("s_sub_u32 s46, s44, s46")
        a("s_lshl_b32 s47, s22, 3")
        a("s_lshl_b32 s48, s25, 1")
        a("s_add_u32 s47, s47, s48")
        a("s_add_u32 s47, s47, s45")
        a("s_mul_i32 s48, s21, 9")
        a("s_add_u32 s48, s48, s46")
        a("s_mul_i32 s49, s47, 18432")
        a("s_lshl_b32 s50, s48, 5")
        a("s_add_u32 s49, s49, s50")
        a(f"s_mov_b32 s{52+it}, s49")
        a(f"buffer_load_dwordx2 a[{6*it}:{6*it+1}], v4, s[12:15], s49 offen")
        a("s_lshr_b32 s51, s47, 1")
        a("s_mul_i32 s51, s51, 18")
        a("s_lshr_b32 s49, s48, 1")
        a("s_add_u32 s51, s51, s49")
        a("s_lshl_b32 s51, s51, 11")
        a("s_and_b32 s49, s47, 1")
        a("s_lshl_b32 s49, s49, 10")
        a("s_add_u32 s51, s51, s49")
        a("s_and_b32 s49, s48, 1")
        a("s_lshl_b32 s49, s49, 9")
        a("s_add_u32 s51, s51, s49")
        if XNF_OFF: a(f"s_add_u32 s51, s51, {XNF_OFF}")
        a(f"buffer_load_dwordx2 a[{6*it+2}:{6*it+3}], v6, s[16:19], s51 offen")
        a(f"buffer_load_dwordx2 a[{6*it+4}:{6*it+5}], v7, s[36:39], s50 offen")
    a.label("K2_l1")
    a("s_barrier")
    stamp(5)
    a("s_cmp_eq_u32 s20, s25")
    a("s_cbranch_scc1 K2_own")
    for f in range(18):
        i, j = divmod(f, 9)
        if f % 4 == 0: a(f"s_add_u32 s35, s28, {f*1024}")
        a(f"buffer_store_dwordx4 {rng('v', acc_reg(i, j))}, v1, s[16:19], s35 offen offset:{(f%4)*1024} sc1")
    a("s_branch K2_pub")
    a.label("K2_own")
    for f in range(18):
        i, j = divmod(f, 9)
        a(f"ds_write_b128 v1, {rng('v', acc_reg(i, j))} offset:{f*1024}")
    a.label("K2_pub")
    a("s_waitcnt vmcnt(0) lgkmcnt(0)")
    stamp(6)
    a("s_barrier")
    if not mega:
        a("s_lshl_b32 s29, s27, 2")
        a(f"s_add_u32 s29, s29, {FLAG2_OFF}")
        a("v_lshlrev_b32 v88, 2, v0")
        a("s_cmp_lg_u32 s20, 0")
        a("s_cbranch_scc1 K2_noflag")
        a("s_mov_b64 exec, 1")
        a("v_mov_b32 v89, 1")
        a("s_lshl_b32 s44, s25, 2")
        a("s_add_u32 s44, s44, s29")
        a("buffer_store_dword v89, v88, s[16:19], s44 offen sc1")
        a.label("K2_noflag")
        a("s_mov_b64 exec, 15")
        a.label("K2_poll")
        a("buffer_load_dword v89, v88, s[16:19], s29 offen sc1")
        a("s_waitcnt vmcnt(0)")
        a("v_cmp_eq_u32 vcc, 0, v89")
        a("s_nop 4")
        a("s_cbranch_vccz K2_polled")
        a("s_sleep 1")
        a("s_branch K2_poll")
    else:
        setflag, poll = mega
        a("s_cmp_lg_u32 s20, 0")
        a("s_cbranch_scc1 K2_noflag")
        setflag(4, 88)
        a.label("K2_noflag")
        a("s_mov_b64 exec, 15")
        a("v_lshlrev_b32 v88, 8, v0")
        a("s_andn2_b32 s29, s2, 3")
        a("s_lshl_b32 s29, s29, 8")
        a(f"s_add_u32 s29, s29, {FLAG_OFF}")
        poll("K2_poll", 88, "s29", 4, 89)
    a.label("K2_polled")
    a("s_mov_b64 exec, -1")
    stamp(3)
    P0 = 96
    a("s_lshl_b32 s44, s20, 10")
    a("v_add_u32 v88, s44, v1")
    for src in range(4):
        lo, le = a.newlabel("K2_so"), a.newlabel("K2_se")
        a(f"s_cmp_eq_u32 s25, {src}")
        a(f"s_cbranch_scc1 {lo}")
        a(f"s_add_u32 s44, s27, {src}")
        a("s_lshl_b32 s44, s44, 2")
        a("s_add_u32 s44, s44, s25")
        a("s_mul_i32 s44, s44, 18")
        a("s_add_u32 s44, s44, s20")
        a("s_lshl_b32 s44, s44, 10")
        a(f"s_add_u32 s44, s44, {PART_OFF}")
        for it in range(5):
            if it == 4:
                a("s_cmp_gt_u32 s20, 1")
                a(f"s_cbranch_scc1 {le}")
            d = P0 + it*16 + src*4
            a(f"buffer_load_dwordx4 v[{d}:{d+3}], v1, s[16:19], s44 offen sc1")
            a("s_add_u32 s44, s44, 4096")
        a(f"s_branch {le}")
        a.label(lo)
        for it in range(5):
            d = P0 + it*16 + src*4
            a(f"ds_read_b128 v[{d}:{d+3}], v88 offset:{4096*it}")
        a.label(le)
    a("s_waitcnt vmcnt(0) lgkmcnt(0)")
    stamp(8)
    for it in range(5):
        if it == 4:
            a("s_cmp_gt_u32 s20, 1")
            a("s_cbranch_scc1 K2_l3")
        P = P0 + it*16
        X = 16 + it*12
        for r in range(6): a(f"v_accvgpr_read_b32 v{88+r}, a{6*it+r}")
        for r in range(4): a(f"v_add_f32 v{P+r}, v{P+r}, v{P+4+r}")
        for (src, dst) in ((88, X), (90, X+4), (92, X+8)):
            a(f"v_lshlrev_b32 v{dst}, 16, v{src}")
            a(f"v_and_b32 v{dst+1}, 0xffff0000, v{src}")
            a(f"v_lshlrev_b32 v{dst+2}, 16, v{src+1}")
            a(f"v_and_b32 v{dst+3}, 0xffff0000, v{src+1}")
        for r in range(4): a(f"v_add_f32 v{P+r}, v{P+r}, v{P+8+r}")
        for r in range(4): a(f"v_mul_f32 v{X+4+r}, v{X+4+r}, v{X+8+r}")
        for r in range(4): a(f"v_cvt_pk_bf16_f32 v{P+r}, 0, v{P+r}")
        for r in range(4): a(f"v_cvt_pk_bf16_f32 v{X+4+r}, 0, v{X+4+r}")
        for r in range(4): a(f"v_add_f32 v{P+12+r}, v{P+12+r}, v{X+4+r}")
        for r in range(4): a(f"v_add_f32 v{P+12+r}, v{X+r}, v{P+12+r}")
        for r in range(4): a(f"v_add_f32 v{P+12+r}, v{P+12+r}, v{P+r}")
        a(f"s_lshl_b32 s44, s{52+it}, 1")
        a(f"buffer_store_dwordx4 v[{P+12}:{P+15}], v5, s[40:43], s44 offen")
    a.label("K2_l3")

def stamps_out(a):
    a("s_waitcnt vmcnt(0)")
    a("s_memrealtime s[78:79]")
    a("s_waitcnt lgkmcnt(0)")
    for n in range(1, 9):
        a(f"s_sub_u32 s{44+n}, s{70+2*n}, s70")
        a(f"v_mov_b32 v{16+n}, s{44+n}")
    a("v_mov_b32 v16, s70")
    a("s_lshl_b32 s36, s2, 2")
    a("s_add_u32 s36, s36, s20")
    a("s_lshl_b32 s36, s36, 6")
    a("s_add_u32 s36, s36, 0xF100000")
    a("v_mov_b32 v28, 0")
    a("buffer_store_dwordx4 v[16:19], v28, s[16:19], s36 offen")
    a("buffer_store_dwordx4 v[20:23], v28, s[16:19], s36 offen offset:16")
    a("buffer_store_dword v24, v28, s[16:19], s36 offen offset:32")
    a("s_waitcnt vmcnt(0)")

def gen_k2(name="k2_kernel", stamps=False):
    a = Asm()
    def stamp(n):
        if stamps: a(f"s_memrealtime s[{70+2*n}:{71+2*n}]")
    a.raw(kernel_header(name))
    a("s_cmp_ge_u32 s2, 256")
    a("s_cbranch_scc1 K2_done")
    stamp(0)
    a("s_load_dwordx2 s[4:5], s[0:1], 96")
    a("s_load_dwordx2 s[8:9], s[0:1], 120")
    a("v_lshrrev_b32 v15, 6, v0")
    a("v_and_b32 v0, 63, v0")
    a("v_readfirstlane_b32 s20, v15")
    a("s_waitcnt lgkmcnt(0)")
    setup(a)
    a("s_cmp_eq_u32 s25, 3")
    a("s_cbranch_scc1 K2_ssm")
    body(a, 48, stamp)
    a("s_branch K2_tail")
    a.label("K2_ssm")
    a.vmq = []; a.lgq = []
    body(a, 36, stamp)
    a.label("K2_tail")
    stamp(2)
    a("s_nop 7")
    tail(a, stamp)
    if stamps: stamps_out(a)
    a.label("K2_done")
    a("s_endpgm")
    return a.text(), kernel_desc(name, NARCH+NACC, NARCH)
```

```python
from common import *
import sys
import k2
ACC = 16
SAC = 160
TMP = 184
NARCH = 200
XR = 0
FR = 24
NRING = 8
NACC = 56
NS = 3
SSTG = 4608
WBASE = NS*SSTG
STG = 36864
PD = 5
K1_LDS = WBASE + NS*STG
SL_OFF = 16384
SL_STR = 208
EG_OFF = SL_OFF + 256*SL_STR
PTL_OFF = K1_LDS
KM_LDS = k2.K2_LDS
LOG2E = 0x3fb8aa3b
INV2PI = 0x3e22f983
def acc_reg(i, j, m): return ACC + ((j*2 + i)*2 + m)*4
def sacc_reg(i, u): return SAC + (u*2 + i)*4
def rng(t, b, n=4): return f"{t}[{b}:{b+n-1}]"

def gen_km(name="parallel_sum__ssm_conv_s5__swiglu_ffn__prompt_kernel", stamps=False, pf_wd=True):
    a = Asm()
    def stamp(n):
        if stamps:
            a(f"s_memrealtime s[{82+2*n}:{83+2*n}]")
    T = TMP
    a.raw(kernel_header(name))
    a("s_cmp_ge_u32 s2, 256")
    a("s_cbranch_scc1 K1_done")
    stamp(0)
    a("s_load_dwordx4 s[4:7], s[0:1], 80")
    a("s_load_dwordx2 s[8:9], s[0:1], 120")
    a("s_load_dwordx4 s[36:39], s[0:1], 24")
    a("s_load_dwordx2 s[10:11], s[0:1], 96")
    a("s_load_dwordx4 s[68:71], s[0:1], 0")
    a("s_load_dwordx2 s[72:73], s[0:1], 16")
    a("s_load_dwordx2 s[74:75], s[0:1], 56")
    a("s_load_dwordx4 s[76:79], s[0:1], 40")
    a("s_load_dwordx2 s[80:81], s[0:1], 112")
    a("v_lshrrev_b32 v15, 6, v0")
    a("v_and_b32 v0, 63, v0")
    a("v_readfirstlane_b32 s20, v15")
    a("v_lshlrev_b32 v1, 4, v0")
    a("s_and_b32 s21, s2, 7")
    a("s_lshr_b32 s22, s2, 3")
    a("s_and_b32 s23, s22, 3")
    a("s_lshl_b32 s21, s21, 2")
    a("s_add_u32 s21, s21, s23")
    a("s_lshr_b32 s22, s22, 2")
    a("s_and_b32 s23, s20, 3")
    a("s_lshl_b32 s23, s23, 4")
    a("s_mul_i32 s24, s21, 288")
    a("s_movk_i32 s25, 3641")
    a("s_movk_i32 s26, 9216")
    a("s_mul_i32 s27, s20, 4608")
    a(f"s_add_u32 s27, s27, {WBASE}")
    a("s_mul_i32 s29, s20, 576")
    a("s_lshl_b32 s28, s22, 3")
    a("s_add_u32 s28, s28, s20")
    a(f"s_mul_i32 s28, s28, {18*2048}")
    if XNF_OFF: a(f"s_add_u32 s28, s28, {XNF_OFF}")
    for q in range(5):
        d = 2+q
        if q: a(f"v_add_u32 v{T}, {q*64}, v0")
        else: a(f"v_mov_b32 v{T}, v0")
        a(f"v_mul_lo_u32 v{T+1}, v{T}, s25")
        a(f"v_lshrrev_b32 v{T+1}, 16, v{T+1}")
        a(f"v_mul_u32_u24 v{T+2}, 18, v{T+1}")
        a(f"v_sub_u32 v{T+2}, v{T}, v{T+2}")
        a(f"v_add_u32 v{T+1}, s23, v{T+1}")
        a(f"v_and_b32 v{T+3}, 0x23, v{T+1}")
        a(f"v_bfe_u32 v{T+4}, v{T+1}, 2, 2")
        a(f"v_lshl_add_u32 v{T+3}, v{T+4}, 3, v{T+3}")
        a(f"v_bfe_u32 v{T+4}, v{T+1}, 4, 1")
        a(f"v_lshl_add_u32 v{T+3}, v{T+4}, 2, v{T+3}")
        a(f"v_mul_lo_u32 v{T+3}, v{T+3}, s26")
        a(f"v_lshl_add_u32 v{T+3}, v{T+2}, 4, v{T+3}")
        a(f"v_add_u32 v{d}, s24, v{T+3}")
    a("s_mul_i32 s23, s20, 36")
    a(f"v_add_u32 v{T}, s23, v0")
    a(f"v_lshrrev_b32 v{T+1}, 3, v{T}")
    a(f"v_xor_b32 v{T+2}, v{T}, v{T+1}")
    a(f"v_and_b32 v{T+2}, 7, v{T+2}")
    a("s_mul_i32 s23, s21, 18")
    a("s_cmp_lt_u32 s20, 4")
    a("s_cselect_b32 s24, 0, 18")
    a("s_sub_u32 s23, s23, s24")
    a(f"v_add_u32 v{T+1}, s23, v{T+1}")
    a(f"v_mul_u32_u24 v{T+1}, 1152, v{T+1}")
    a(f"v_lshl_add_u32 v7, v{T+2}, 4, v{T+1}")
    a("s_waitcnt lgkmcnt(0)")
    a("s_cmp_lt_u32 s20, 4")
    a("s_cselect_b32 s12, s4, s6")
    a("s_cselect_b32 s13, s5, s7")
    a("s_cselect_b32 s40, s36, s38")
    a("s_cselect_b32 s41, s37, s39")
    a("s_and_b32 s13, s13, 0xffff")
    a(f"s_mov_b32 s14, {576*4608*2}")
    a("s_mov_b32 s15, 0x00020000")
    a("s_and_b32 s41, s41, 0xffff")
    a(f"s_mov_b32 s42, {576*576*2}")
    a("s_mov_b32 s43, 0x00020000")
    srd(a, 16, 8, WS_BYTES)
    srd(a, 44, 10, 4608*576*2)
    srd(a, 64, 80, 256)
    a("s_lshl_b32 s101, s2, 8")
    a(f"s_add_u32 s101, s101, {FLAG_OFF}")
    def setflag(val, t0=T+10):
        a("s_mov_b64 exec, 1")
        a(f"s_add_u32 s100, s3, {val}")
        a(f"v_mov_b32 v{t0}, s100")
        a(f"v_mov_b32 v{t0+1}, 0")
        a(f"buffer_store_dword v{t0}, v{t0+1}, s[16:19], s101 offen sc1")
        a("s_mov_b64 exec, -1")
    def poll(lbl, vaddr, soff, stage, t0):
        a.label(lbl)
        a(f"buffer_load_dword v{t0}, v{vaddr}, s[16:19], {soff} offen sc1")
        a(f"s_add_u32 s100, s3, {stage}")
        a("s_waitcnt vmcnt(0)")
        a(f"v_subrev_u32 v{t0}, s100, v{t0}")
        a(f"v_cmp_le_u32 vcc, {8-stage}, v{t0}")
        a("s_nop 4")
        a(f"s_cbranch_vccz {lbl}_ok")
        a("s_sleep 2")
        a(f"s_branch {lbl}")
        a.label(lbl + "_ok")

    def dma(stage, q):
        b = stage % NS
        if q < 5:
            a(f"s_add_u32 m0, s27, {b*STG + q*1024}")
            a(f"s_mov_b32 s30, {stage*64*9216}")
            if q == 4: a("s_mov_b32 exec_hi, 0")
            a.vm(f"buffer_load_dwordx4 v{2+q}, s[12:15], s30 offen lds", f"D{stage}")
            if q == 4: a("s_mov_b32 exec_hi, -1")
        else:
            a(f"s_add_u32 m0, s29, {b*SSTG}")
            a(f"s_movk_i32 s30, {stage*128}")
            a("s_mov_b32 exec_hi, 0xf")
            a.vm(f"buffer_load_dwordx4 v7, s[40:43], s30 offen lds", f"D{stage}")
            a("s_mov_b32 exec_hi, -1")
    def xload(ks, i):
        slot = ks % 3
        if i == 0:
            a(f"s_add_u32 s31, s28, {ks*2048}")
        a.vm(f"buffer_load_dwordx4 {rng('a', XR + slot*8 + i*4)}, v1, s[16:19], s31 offen offset:{i*1024} sc1", f"X{ks}")
    NF = 21
    def fread(f):
        ks, n = divmod(f, NF)
        stage, sub = divmod(ks, 2)
        b = stage % NS
        dst = FR + (f % NRING)*4
        if n < 18:
            j, m = divmod(n, 2)
            off = m*18432 + sub*9216 + j*32
            a.lg(f"ds_read_b64_tr_b16 {rng('a', dst, 2)}, v{11+b} offset:{off}", f"F{f}")
            a.lg(f"ds_read_b64_tr_b16 {rng('a', dst+2, 2)}, v{11+b} offset:{off+4608}", f"F{f}")
        else:
            u = n - 18
            areg = (8 + sub) if u < 2 else (T+12+sub)
            a.lg(f"ds_read_b128 {rng('a', dst)}, v{areg} offset:{b*SSTG + (2048 if u == 1 else 0)}", f"F{f}")

    def cst():
        a("s_sub_u32 s52, s20, 2")
        a("s_lshl_b32 s52, s52, 6")
        a("v_add_u32 v40, s52, v0")
        a(f"s_mov_b32 s57, {CST_OFF}")
        a("s_mov_b32 s58, 7456541")
        a("s_mul_i32 s59, s2, 324")
        for rnd in range(2):
            B = 16 + rnd*12
            a(f"v_add_u32 v41, {rnd*192}, v40")
            a("v_min_u32 v41, 323, v41")
            a("v_add_u32 v41, s59, v41")
            a("v_mul_hi_u32 v42, v41, s58")
            a("v_mul_u32_u24 v43, 576, v42")
            a("v_sub_u32 v43, v41, v43")
            a("v_cmp_le_u32 vcc, 72, v42")
            a("v_subrev_u32 v44, 72, v42")
            a("v_mov_b32 v46, s76")
            a("v_mov_b32 v47, s77")
            a("v_mov_b32 v48, s78")
            a("v_mov_b32 v49, s79")
            a("v_cndmask_b32 v44, v42, v44, vcc")
            a("v_cndmask_b32 v46, v46, v48, vcc")
            a("v_cndmask_b32 v47, v47, v49, vcc")
            a(f"v_mov_b32 v{B+9}, 0x80008000")
            a(f"v_cndmask_b32 v{B+9}, 0, v{B+9}, vcc")
            a("v_mul_u32_u24 v45, 9216, v44")
            a("v_lshl_add_u32 v45, v43, 1, v45")
            a("v_lshlrev_b32 v50, 1, v43")
            a("v_add_u32 v51, 1, v50")
            a("v_cndmask_b32 v50, v50, v51, vcc")
            a("v_mul_u32_u24 v50, 1152, v50")
            a(f"v_lshl_add_u32 v{B+8}, v44, 4, v50")
            a("v_add_co_u32 v46, vcc, v46, v45")
            a("s_nop 1")
            a("v_addc_co_u32 v47, vcc, 0, v47, vcc")
            a("v_add_co_u32 v48, vcc, 4608, v46")
            a("s_nop 1")
            a("v_addc_co_u32 v49, vcc, 0, v47, vcc")
            for e in range(8):
                base = "v[46:47]" if e < 4 else "v[48:49]"
                a(f"global_load_ushort v{B+e}, {base}, off offset:{(e%4)*1152}")
        a("s_waitcnt vmcnt(0)")
        for rnd in range(2):
            B = 16 + rnd*12
            for r in range(4):
                a(f"v_lshl_or_b32 v{52+4*rnd+r}, v{B+1+2*r}, 16, v{B+2*r}")
                a(f"v_xor_b32 v{52+4*rnd+r}, v{B+9}, v{52+4*rnd+r}")
            a(f"buffer_store_dwordx4 v[{52+4*rnd}:{55+4*rnd}], v{B+8}, s[16:19], s57 offen sc1")
    def phase0():
        a("s_cmp_gt_u32 s20, 1")
        a("s_cbranch_scc1 KM_r1")
        srd(a, 48, 68, 2048*576*2)
        a("v_lshrrev_b32 v48, 4, v0")
        a("v_and_b32 v49, 15, v0")
        a("v_mul_u32_u24 v50, 1152, v48")
        a("v_lshl_add_u32 v50, v49, 3, v50")
        a("s_lshl_b32 s52, s22, 8")
        a("s_lshl_b32 s53, s21, 3")
        a("s_add_u32 s52, s52, s53")
        a("s_lshl_b32 s53, s20, 2")
        a("s_add_u32 s52, s52, s53")
        a("s_mul_i32 s53, s52, 1152")
        for i in range(9):
            a(f"buffer_load_dwordx2 v[{16+2*i}:{17+2*i}], v50, s[48:51], s53 offen offset:{i*128}")
        a("v_add_u32 v36, s52, v48")
        a("v_lshrrev_b32 v37, 5, v36")
        a(f"v_mul_u32_u24 v37, {18*2048}, v37")
        a("v_bfe_u32 v38, v36, 4, 1")
        a("v_lshl_add_u32 v37, v38, 10, v37")
        a("v_and_b32 v38, 15, v36")
        a("v_lshl_add_u32 v37, v38, 4, v37")
        a("v_lshrrev_b32 v38, 3, v49")
        a("v_lshl_add_u32 v37, v38, 11, v37")
        a("v_bfe_u32 v38, v49, 1, 2")
        a("v_lshl_add_u32 v37, v38, 8, v37")
        a("v_and_b32 v38, 1, v49")
        a("v_lshl_add_u32 v37, v38, 3, v37")
        a("v_mov_b32 v38, 0x3f803f80")
        a("v_mov_b32 v34, 0")
        a("v_mov_b32 v35, 0")
        a("s_waitcnt vmcnt(0)")
        for i in range(18):
            d = 34 + (i & 1)
            a(f"v_dot2_f32_bf16 v{d}, v{16+i}, v38, v{d}")
        a("s_nop 2")
        a("v_add_f32 v34, v34, v35")
        def red(v):
            for sh in (8, 4, 2, 1):
                a("s_nop 1")
                a(f"v_add_f32_dpp v{v}, v{v}, v{v} row_ror:{sh} row_mask:0xf bank_mask:0xf")
        red(34)
        a("v_mul_f32 v34, 0x3ae38e39, v34")
        a("v_mov_b32 v35, 0")
        a("v_mov_b32 v36, 0")
        for i in range(18):
            t = 40 + 2*(i & 3)
            a(f"v_lshlrev_b32 v{t}, 16, v{16+i}")
            a(f"v_and_b32 v{t+1}, 0xffff0000, v{16+i}")
            a(f"v_sub_f32 v{t}, v{t}, v34")
            a(f"v_sub_f32 v{t+1}, v{t+1}, v34")
            a(f"v_fmac_f32 v35, v{t}, v{t}")
            a(f"v_fmac_f32 v36, v{t+1}, v{t+1}")
        a("v_add_f32 v35, v35, v36")
        red(35)
        a("v_mul_f32 v35, 0x3ae38e39, v35")
        a("v_cvt_pk_bf16_f32 v34, 0, v34")
        a("v_cvt_pk_bf16_f32 v35, 0, v35")
        a("v_add_f32 v35, 0x3727c5ac, v35")
        a("v_cvt_pk_bf16_f32 v35, 0, v35")
        a("v_sqrt_f32 v35, v35")
        a("s_nop 0")
        a("v_cvt_pk_bf16_f32 v35, 0, v35")
        a("v_rcp_f32 v35, v35")
        a("s_nop 0")
        for i in range(18):
            t = 40 + 2*(i & 3)
            a(f"v_lshlrev_b32 v{t}, 16, v{16+i}")
            a(f"v_and_b32 v{t+1}, 0xffff0000, v{16+i}")
            a(f"v_sub_f32 v{t}, v{t}, v34")
            a(f"v_sub_f32 v{t+1}, v{t+1}, v34")
            a(f"v_cvt_pk_bf16_f32 v{t}, 0, v{t}")
            a(f"v_cvt_pk_bf16_f32 v{t+1}, 0, v{t+1}")
            a(f"v_mul_f32 v{t}, v{t}, v35")
            a(f"v_mul_f32 v{t+1}, v{t+1}, v35")
            a(f"v_cvt_pk_bf16_f32 v{16+i}, v{t}, v{t+1}")
            if i & 1:
                a(f"s_mov_b32 s53, {XNF_OFF + (i//2)*4096}")
                a(f"buffer_store_dwordx2 v[{16+i-1}:{16+i}], v37, s[16:19], s53 offen sc1")
        a("s_waitcnt vmcnt(0)")
        a("s_branch KM_r_end")
        a.label("KM_r1")
        a.label("KM_r2")
        a("s_cmp_lg_u32 s20, 6")
        a("s_cbranch_scc1 KM_r3")
        a("s_memrealtime s[52:53]")
        a("s_waitcnt lgkmcnt(0)")
        a("s_lshl_b32 s52, s52, 3")
        a("s_or_b32 s52, s52, 8")
        a("s_mov_b64 exec, 1")
        a("v_mov_b32 v16, s52")
        a("v_mov_b32 v17, 0")
        a("v_mov_b32 v18, 0")
        a("v_mov_b32 v19, s52")
        a("buffer_atomic_cmpswap v[16:17], v18, s[64:67], 0 offen sc0")
        a("s_waitcnt vmcnt(0)")
        a("v_cmp_eq_u32 vcc, 0, v16")
        a("s_nop 1")
        a("v_cndmask_b32 v16, v16, v19, vcc")
        a(f"v_mov_b32 v18, {PTL_OFF + 2880}")
        a("ds_write_b32 v18, v16")
        a("s_mov_b64 exec, -1")
        a("s_branch KM_r_end")
        a.label("KM_r3")
        a("s_cmp_lg_u32 s20, 5")
        a("s_cbranch_scc1 KM_r_end")
        a("s_mul_i32 s52, s21, 18")
        a("v_min_u32 v16, 17, v0")
        a("v_add_u32 v17, s52, v16")
        a("v_lshlrev_b32 v17, 1, v17")
        a("global_load_ushort v18, v17, s[70:71]")
        a("global_load_ushort v19, v17, s[72:73]")
        a("global_load_ushort v20, v17, s[74:75]")
        a("s_waitcnt vmcnt(0)")
        a("v_lshlrev_b32 v18, 16, v18")
        a("v_lshlrev_b32 v19, 16, v19")
        a("v_lshlrev_b32 v20, 16, v20")
        a(f"v_mul_f32 v20, {LOG2E}, v20")
        a("v_exp_f32 v20, v20")
        a("s_nop 0")
        a("v_cvt_pk_bf16_f32 v20, 0, v20")
        a("v_mul_f32 v21, v20, v18")
        a("v_mul_f32 v22, v20, v19")
        a(f"v_mul_f32 v21, {LOG2E}, v21")
        a(f"v_mul_f32 v22, {INV2PI}, v22")
        a("v_exp_f32 v21, v21")
        a("v_fract_f32 v22, v22")
        a("s_nop 0")
        a("v_cos_f32 v23, v22")
        a("v_sin_f32 v24, v22")
        a("s_nop 0")
        a("v_mul_f32 v64, v21, v23")
        a("v_mul_f32 v65, v21, v24")
        a("v_add_f32 v25, -1.0, v64")
        a("v_mul_f32 v26, v18, v18")
        a("v_fmac_f32 v26, v19, v19")
        a("v_rcp_f32 v27, v26")
        a("v_mul_f32 v66, v25, v18")
        a("v_fmac_f32 v66, v65, v19")
        a("v_mul_f32 v67, v65, v18")
        a("v_fma_f32 v67, -v25, v19, v67")
        a("v_fma_f32 v28, -v26, v27, 1.0")
        a("v_fmac_f32 v27, v28, v27")
        a("v_add_f32 v27, v27, v27")
        a("v_mul_f32 v66, v66, v27")
        a("v_mul_f32 v67, v67, v27")
        a("v_mov_b32 v72, v64")
        a("v_mov_b32 v73, v65")
        def cmul(d, x, y):
            a(f"v_mul_f32 v{d}, v{x}, v{y}")
            a(f"v_mul_f32 v{d+1}, v{x}, v{y+1}")
            a(f"v_fma_f32 v{d}, -v{x+1}, v{y+1}, v{d}")
            a(f"v_fmac_f32 v{d+1}, v{x+1}, v{y}")
        for j in range(1, 16):
            cmul(72+2*j, 64, 70+2*j)
        a("v_mov_b32 v68, v102")
        a("v_mov_b32 v69, v103")
        cmul(30, 68, 68); cmul(32, 30, 30); cmul(30, 32, 32); cmul(70, 30, 30)
        a("v_mul_u32_u24 v17, 160, v16")
        a(f"v_add_u32 v17, {PTL_OFF}, v17")
        a("v_cmp_gt_u32 vcc, 18, v0")
        a("s_and_saveexec_b64 s[60:61], vcc")
        for q in range(10):
            a(f"ds_write_b128 v17, v[{64+4*q}:{67+4*q}] offset:{q*16}")
        a("s_mov_b64 exec, s[60:61]")
        a.label("KM_r_end")
    def dma01():
        for q in range(6): dma(0, q)
        for q in range(6): dma(1, q)
    a("s_bitcmp1_b32 0x63, s20")
    a("s_cbranch_scc1 KM_nodma")
    dma01()
    a.label("KM_nodma")
    a(f"v_lshrrev_b32 v{T}, 2, v0")
    a(f"v_mul_u32_u24 v{T}, 288, v{T}")
    a(f"v_and_b32 v{T+1}, 3, v0")
    a(f"v_lshl_add_u32 v11, v{T+1}, 3, v{T}")
    a(f"v_add_u32 v11, {WBASE}, v11")
    for b in range(1, NS):
        a(f"v_add_u32 v{11+b}, {b*STG}, v11")
    a(f"v_and_b32 v{T}, 15, v0")
    a(f"v_lshrrev_b32 v{T+1}, 4, v0")
    a(f"v_xor_b32 v{T+2}, v{T}, v{T+1}")
    a(f"v_and_b32 v{T+2}, 7, v{T+2}")
    a(f"v_lshlrev_b32 v8, 7, v{T}")
    a(f"v_lshl_add_u32 v8, v{T+2}, 4, v8")
    a("v_xor_b32 v9, 64, v8")
    a(f"v_and_b32 v{T+3}, 3, v0")
    a(f"v_xor_b32 v{T+2}, v{T+3}, v{T+1}")
    a(f"v_lshlrev_b32 v{T+12}, 7, v{T+3}")
    a(f"v_lshl_add_u32 v{T+12}, v{T+2}, 4, v{T+12}")
    a(f"v_add_u32 v{T+12}, 4096, v{T+12}")
    a(f"v_xor_b32 v{T+13}, 64, v{T+12}")
    a("s_and_b32 s23, s20, 3")
    a("s_mul_i32 s23, s23, 36")
    a(f"v_add_u32 v{T}, s23, v0")
    a(f"v_mul_u32_u24 v{T+1}, 3641, v{T}")
    a(f"v_lshrrev_b32 v{T+1}, 16, v{T+1}")
    a(f"v_mul_u32_u24 v{T+2}, 18, v{T+1}")
    a(f"v_sub_u32 v{T+2}, v{T}, v{T+2}")
    a("s_lshl_b32 s23, s22, 3")
    a(f"v_add_u32 v{T+1}, s23, v{T+1}")
    a(f"v_mul_lo_u32 v{T+1}, v{T+1}, s26")
    a(f"v_lshl_add_u32 v{T+1}, v{T+2}, 4, v{T+1}")
    a("s_mul_i32 s24, s21, 288")
    a(f"v_add_u32 v14, s24, v{T+1}")
    def wpf(stage):
        a(f"s_mov_b32 s49, {stage*64*9216}")
        a("s_mov_b32 exec_hi, 0xf")
        a.vm(f"buffer_load_dwordx4 v[{T+4}:{T+7}], v14, s[12:15], s49 offen", "PF")
        a("s_mov_b32 exec_hi, -1")
    a("s_bitcmp1_b32 0x63, s20")
    a("s_cbranch_scc1 KM_nopf0")
    for st in (2, 3): wpf(st)
    a.label("KM_nopf0")
    a("s_mul_i32 s49, s21, 18")
    a(f"v_add_u32 v{T+9}, s49, v0")
    a(f"v_lshlrev_b32 v{T+9}, 3, v{T+9}")
    a(f"v_lshl_add_u32 v10, s20, 10, v1")
    a("s_mul_i32 s48, s2, 20736")
    a("s_add_u32 s46, s48, 20736")
    phase0()
    a("s_waitcnt lgkmcnt(0)")
    a("s_barrier")
    a(f"v_mov_b32 v{T}, {PTL_OFF + 2880}")
    a(f"ds_read_b32 v{T+1}, v{T}")
    a("s_waitcnt lgkmcnt(0)")
    a(f"v_readfirstlane_b32 s3, v{T+1}")
    a("s_nop 3")
    a("s_cmp_lg_u32 s20, 7")
    a("s_cbranch_scc1 KM_p0wait")
    setflag(1)
    a("s_mov_b32 exec_hi, 0")
    a(f"v_lshlrev_b32 v{T}, 8, v0")
    a("s_lshl_b32 s49, s22, 13")
    a(f"s_add_u32 s49, s49, {FLAG_OFF}")
    poll("KM_poll0", T, "s49", 1, T+1)
    a("s_mov_b64 exec, -1")
    a.label("KM_p0wait")
    a("s_bitcmp0_b32 0x63, s20")
    a("s_cbranch_scc1 KM_p0b")
    a.vmq = []
    dma01()
    for st in (2, 3): wpf(st)
    a("s_branch KM_p0c")
    a.label("KM_p0b")
    a("s_cmp_gt_u32 s20, 4")
    a("s_cbranch_scc1 KM_p0c")
    cst()
    a.label("KM_p0c")
    a("s_mul_i32 s48, s2, 20736")
    a.wait_all()
    a("s_barrier")
    for ks0 in range(2):
        for i in range(2): xload(ks0, i)
    stamp(1)
    TOT = 18*NF
    for f in range(PD): fread(f)
    pend = []
    pf_left = 3 if pf_wd else 0
    for f in range(TOT):
        ks, n = divmod(f, NF)
        fill = []
        if (f+PD) % (2*NF) == 0 and f+PD < TOT:
            s1 = (f+PD)//(2*NF)
            a.wait(vm=f"D{s1}")
            a("s_barrier")
            if s1+1 <= 8:
                pend = [(s1+1, q) for q in range(6)]
        if f+PD < TOT:
            fill.append(lambda: fread(f+PD))
        if n == 0 and ks+2 < 18:
            for i in range(2):
                fill.append(lambda i=i: xload(ks+2, i))
        elif pend and n % 2 == 1:
            st, q = pend.pop(0)
            fill.append(lambda st=st, q=q: dma(st, q))
        elif n == 14 and ks % 2 == 0 and ks//2 + 4 <= 8:
            fill.append(lambda: wpf(ks//2 + 4))
        elif pf_left and ks >= 4 and n == 10:
            k = 3 - pf_left; pf_left -= 1
            def pf(k=k):
                a(f"s_add_u32 s49, s48, {k*8192}")
                a.vm(f"buffer_load_dwordx4 v[{T+4}:{T+7}], v10, s[44:47], s49 offen", "PF")
            fill.append(pf)
        if n == 0:
            a.wait(vm=f"X{ks}", lg=f"F{f}")
        else:
            a.wait(lg=f"F{f}")
        slot = ks % 3
        src = rng('a', FR + (f % NRING)*4)
        for i in range(2):
            r = acc_reg(i, n//2, n % 2) if n < 18 else sacc_reg(i, n-18)
            xsrc = rng('a', XR + slot*8 + i*4)
            c = "0" if ks == 0 else rng('v', r)
            a(f"v_mfma_f32_16x16x32_bf16 {rng('v', r)}, {src}, {xsrc}, {c}")
            if fill: fill.pop(0)()
        while fill: fill.pop(0)()
    stamp(2)
    a("s_barrier")
    a(f"v_and_b32 v{T+1}, 15, v0")
    a(f"v_lshrrev_b32 v{T+2}, 4, v0")
    a(f"v_mul_u32_u24 v{T+1}, {SL_STR}, v{T+1}")
    a(f"v_lshl_add_u32 v{T+1}, v{T+2}, 4, v{T+1}")
    a(f"s_mul_i32 s49, s20, {32*SL_STR}")
    a(f"s_add_u32 s49, s49, {SL_OFF}")
    a(f"v_add_u32 v{T+1}, s49, v{T+1}")
    for i in range(2):
        for u in range(3):
            a(f"ds_write_b128 v{T+1}, {rng('v', sacc_reg(i,u))} offset:{i*16*SL_STR + u*64}")
    a("s_waitcnt lgkmcnt(0)")
    a("s_barrier")
    a("s_lshl_b32 s32, s22, 3")
    a("s_add_u32 s32, s32, s20")
    a("s_mul_i32 s32, s32, 180")
    a("s_mul_i32 s33, s21, 9")
    a("s_lshr_b32 s33, s33, 1")
    a("s_add_u32 s32, s32, s33")
    a("s_lshl_b32 s32, s32, 11")
    a(f"s_add_u32 s32, s32, {HF_OFF}")
    a("s_mov_b32 s60, 0xbfb8aa3b")
    a("s_mov_b32 s61, 0xbfb8aa3b")
    a("s_mov_b32 s62, 1.0")
    a("s_mov_b32 s63, 1.0")
    a("s_and_b32 s33, s21, 1")

    def act(i, j, dst):
        g = acc_reg(i, j, 0); u = acc_reg(i, j, 1)
        for r in range(4): a(f"v_cvt_pk_bf16_f32 v{g+r}, 0, v{g+r}")
        for r in (0, 2): a(f"v_pk_mul_f32 v[{T+r}:{T+r+1}], v[{g+r}:{g+r+1}], s[60:61]")
        for r in range(4): a(f"v_exp_f32 v{T+r}, v{T+r}")
        for r in range(4): a(f"v_cvt_pk_bf16_f32 v{u+r}, 0, v{u+r}")
        for r in (0, 2): a(f"v_pk_add_f32 v[{T+r}:{T+r+1}], v[{T+r}:{T+r+1}], s[62:63]")
        for r in range(4): a(f"v_rcp_f32 v{T+r}, v{T+r}")
        a("s_nop 0")
        for r in (0, 2): a(f"v_pk_mul_f32 v[{T+r}:{T+r+1}], v[{g+r}:{g+r+1}], v[{T+r}:{T+r+1}]")
        for r in range(4): a(f"v_cvt_pk_bf16_f32 v{T+r}, 0, v{T+r}")
        for r in (0, 2): a(f"v_pk_mul_f32 v[{T+r}:{T+r+1}], v[{T+r}:{T+r+1}], v[{u+r}:{u+r+1}]")
        a(f"v_cvt_pk_bf16_f32 v{dst}, v{T}, v{T+1}")
        a(f"v_cvt_pk_bf16_f32 v{dst+1}, v{T+2}, v{T+3}")
    def group(gi):
        lo, le = a.newlabel("K1_g_odd"), a.newlabel("K1_g_end")
        a(f"s_add_u32 s35, s32, {gi*2048}")
        a("s_cmp_eq_u32 s33, 1")
        a(f"s_cbranch_scc1 {lo}")
        for odd in (False, True):
            if odd: a.label(lo)
            if not odd: js = [(0,1), (2,3), (4,5), (6,7), (8,)][gi]
            else: js = [(0,), (1,2), (3,4), (5,6), (7,8)][gi]
            for i in range(2):
                d0 = acc_reg(i, js[0], 0)
                if len(js) == 2:
                    act(i, js[0], d0); act(i, js[1], d0+2)
                    a(f"buffer_store_dwordx4 v[{d0}:{d0+3}], v1, s[16:19], s35 offen offset:{i*1024} sc1")
                else:
                    act(i, js[0], d0)
                    a(f"buffer_store_dwordx2 v[{d0}:{d0+1}], v1, s[16:19], s35 offen offset:{i*1024 + (8 if odd else 0)} sc1")
            if not odd: a(f"s_branch {le}")
        a.label(le)
    S = SAC
    a("s_cmp_gt_u32 s20, 4")
    a("s_cbranch_scc1 K1_noscan")
    a(f"v_lshl_add_u32 v{T}, s20, 6, v0")
    a(f"v_cmp_gt_u32 vcc, 288, v{T}")
    a("s_and_saveexec_b64 s[50:51], vcc")
    a(f"v_mul_u32_u24 v{T+1}, 3641, v{T}")
    a(f"v_lshrrev_b32 v{T+1}, 16, v{T+1}")
    a(f"v_mul_u32_u24 v{T+2}, 18, v{T+1}")
    a(f"v_sub_u32 v{T+2}, v{T}, v{T+2}")
    a(f"v_mul_u32_u24 v{T+3}, 160, v{T+2}")
    a(f"v_add_u32 v{T+3}, {PTL_OFF}, v{T+3}")
    a(f"ds_read_b64 v[{T+4}:{T+5}], v{T+3}")
    a(f"v_mul_u32_u24 v{T+6}, {16*SL_STR}, v{T+1}")
    a(f"v_lshl_add_u32 v{T+6}, v{T+2}, 2, v{T+6}")
    a(f"v_add_u32 v{T+6}, {SL_OFF}, v{T+6}")
    a(f"v_mov_b32 v{S+16}, 0")
    a(f"v_mov_b32 v{S+17}, 0")
    for hb in range(2):
        for t in range(8):
            tt = hb*8 + t
            a(f"ds_read_b32 v{S+2*t}, v{T+6} offset:{tt*SL_STR}")
            if t == 6: a("s_waitcnt lgkmcnt(8)")
            a(f"ds_read_b32 v{S+2*t+1}, v{T+6} offset:{tt*SL_STR + 72}")
        a("s_waitcnt lgkmcnt(0)")
        for t in range(8):
            r = S+2*t
            pr = (S+16) if t == 0 else (S+2*t-2)
            if hb == 0 and t == 0: continue
            a(f"v_fma_f32 v{r}, -v{T+5}, v{pr+1}, v{r}")
            a(f"v_fmac_f32 v{r+1}, v{T+5}, v{pr}")
            a(f"v_fmac_f32 v{r}, v{T+4}, v{pr}")
            a(f"v_fmac_f32 v{r+1}, v{T+4}, v{pr+1}")
        for t in range(8):
            tt = hb*8 + t
            if tt == 0: continue
            a(f"ds_write_b32 v{T+6}, v{S+2*t} offset:{tt*SL_STR}")
            a(f"ds_write_b32 v{T+6}, v{S+2*t+1} offset:{tt*SL_STR + 72}")
        if hb == 0:
            a(f"v_mov_b32 v{S+16}, v{S+14}")
            a(f"v_mov_b32 v{S+17}, v{S+15}")
            a("s_waitcnt lgkmcnt(0)")
    a(f"v_lshlrev_b32 v{T+7}, 3, v{T}")
    a(f"v_add_u32 v{T+7}, {EG_OFF}, v{T+7}")
    a(f"ds_write_b64 v{T+7}, v[{S+14}:{S+15}]")
    a("s_mov_b64 exec, s[50:51]")
    a.label("K1_noscan")
    a("s_cmp_eq_u32 s20, 0")
    a("s_cbranch_scc1 KM_skipg0")
    group(0)
    a.label("KM_skipg0")
    a("s_waitcnt lgkmcnt(0)")
    a("s_barrier")
    a("s_cmp_lg_u32 s20, 0")
    a("s_cbranch_scc1 K1_nopfx")
    a("v_cmp_gt_u32 vcc, 18, v0")
    a("s_and_saveexec_b64 s[50:51], vcc")
    a(f"v_mul_u32_u24 v{T+3}, 160, v0")
    a(f"v_add_u32 v{T+3}, {PTL_OFF}, v{T+3}")
    a(f"ds_read_b128 v[{T+4}:{T+7}], v{T+3} offset:16")
    a(f"v_lshlrev_b32 v{T+8}, 3, v0")
    a(f"v_add_u32 v{T+8}, {EG_OFF}, v{T+8}")
    def cfma(d, m, x, e):
        if d != e:
            a(f"v_fma_f32 v{d}, v{m}, v{x}, v{e}")
            a(f"v_fma_f32 v{d+1}, v{m}, v{x+1}, v{e+1}")
        else:
            a(f"v_fmac_f32 v{d}, v{m}, v{x}")
            a(f"v_fmac_f32 v{d+1}, v{m}, v{x+1}")
        a(f"v_fma_f32 v{d}, -v{m+1}, v{x+1}, v{d}")
        a(f"v_fmac_f32 v{d+1}, v{m+1}, v{x}")
    for sg in range(8):
        a(f"ds_read_b64 v[{S+2*sg}:{S+2*sg+1}], v{T+8} offset:{sg*144}")
    a("s_waitcnt lgkmcnt(0)")
    for sg in range(1, 8):
        cfma(S+2*sg, T+4, S+2*sg-2, S+2*sg)
    a(f"v_mov_b32 v{S+16}, v{S+14}")
    a(f"v_mov_b32 v{S+17}, v{S+15}")
    for sg in range(8):
        a(f"ds_read_b64 v[{S+2*sg}:{S+2*sg+1}], v{T+8} offset:{(8+sg)*144}")
    a("s_waitcnt lgkmcnt(0)")
    cfma(S, T+4, S+16, S)
    for sg in range(1, 8):
        cfma(S+2*sg, T+4, S+2*sg-2, S+2*sg)
    a(f"s_mul_i32 s52, s22, {576*8}")
    a(f"s_add_u32 s52, s52, {AGG_OFF}")
    a(f"buffer_store_dwordx2 v[{S+14}:{S+15}], v{T+9}, s[16:19], s52 offen sc1")
    a("s_waitcnt vmcnt(0)")
    setflag(2)
    group(0)
    a.label("K1_nopfx")
    group(1)
    group(2)
    a("s_cmp_lg_u32 s20, 0")
    a("s_cbranch_scc1 K1_nopfx2")
    a(f"v_mov_b32 v{S+16}, 0")
    a(f"v_mov_b32 v{S+17}, 0")
    a("s_cmp_eq_u32 s22, 0")
    a("s_cbranch_scc1 K1_nogather")
    a("v_cmp_gt_u32 vcc, s22, v0")
    a("s_and_saveexec_b64 s[50:51], vcc")
    a(f"v_lshlrev_b32 v{T+10}, 13, v0")
    a("s_and_b32 s53, s2, 31")
    a("s_lshl_b32 s53, s53, 8")
    a(f"s_add_u32 s53, s53, {FLAG_OFF}")
    poll("K1_poll", T+10, "s53", 2, T+11)
    a.label("K1_polled")
    a("s_mov_b64 exec, s[50:51]")
    a("v_cmp_gt_u32 vcc, 18, v0")
    a("s_and_saveexec_b64 s[50:51], vcc")
    a(f"s_mov_b32 s52, {AGG_OFF}")
    for m in range(7):
        a(f"s_cmp_le_u32 s22, {m}")
        a("s_cbranch_scc1 K1_gld")
        a(f"buffer_load_dwordx2 v[{S+2*m}:{S+2*m+1}], v{T+9}, s[16:19], s52 offen sc1")
        a(f"s_add_u32 s52, s52, {576*8}")
    a.label("K1_gld")
    a("s_waitcnt vmcnt(0)")
    for m in range(7):
        a(f"s_cmp_le_u32 s22, {m}")
        a("s_cbranch_scc1 K1_gdn")
        cfma(S+2*m, T+6, S+16, S+2*m)
        a(f"v_mov_b32 v{S+16}, v{S+2*m}")
        a(f"v_mov_b32 v{S+17}, v{S+2*m+1}")
    a.label("K1_gdn")
    a("s_mov_b64 exec, s[50:51]")
    a.label("K1_nogather")
    a("v_cmp_gt_u32 vcc, 18, v0")
    a("s_and_saveexec_b64 s[50:51], vcc")
    for hb in range(2):
        for sg in range(8):
            a(f"ds_read_b64 v[{S+2*sg}:{S+2*sg+1}], v{T+8} offset:{(hb*8+sg)*144}")
        a("s_waitcnt lgkmcnt(0)")
        for sg in range(8):
            prev = (S+16) if sg == 0 else (S+2*sg-2)
            a(f"ds_write_b64 v{T+8}, v[{prev}:{prev+1}] offset:{(hb*8+sg)*144}")
            cfma(S+2*sg, T+4, prev, S+2*sg)
        a(f"v_mov_b32 v{S+16}, v{S+14}")
        a(f"v_mov_b32 v{S+17}, v{S+15}")
        a("s_waitcnt lgkmcnt(0)")
    a("s_mov_b64 exec, s[50:51]")
    a.label("K1_nopfx2")
    group(3)
    group(4)
    a("s_cmp_lg_u32 s20, 1")
    a("s_cbranch_scc1 KM_nochk")
    a(f"v_lshlrev_b32 v{T+4}, 8, v0")
    for qq in range(4):
        a(f"s_mov_b32 s49, {FLAG_OFF + qq*16384}")
        poll(f"KM_pollc{qq}", T+4, "s49", 2, T+5)
    a.label("KM_nochk")
    a("s_lshr_b32 s50, s20, 1")
    a("s_and_b32 s51, s20, 1")
    a("s_lshl_b32 s52, s50, 6")
    a(f"v_add_u32 v{T}, s52, v0")
    a(f"v_mul_u32_u24 v{T+1}, {SL_STR}, v{T}")
    a("s_lshl_b32 s53, s51, 3")
    a(f"s_add_u32 s54, s53, {SL_OFF}")
    a(f"v_add_u32 v{T+1}, s54, v{T+1}")
    a(f"v_and_b32 v{T+2}, 15, v0")
    a(f"v_lshlrev_b32 v{T+2}, 3, v{T+2}")
    a("s_mul_i32 s54, s51, 320")
    a(f"s_add_u32 s54, s54, {PTL_OFF}")
    a(f"v_add_u32 v{T+2}, s54, v{T+2}")
    a(f"v_mov_b32 v{T+4}, s54")
    a(f"v_lshrrev_b32 v{T+3}, 4, v{T}")
    a(f"v_mul_u32_u24 v{T+3}, 144, v{T+3}")
    a("s_lshl_b32 s55, s51, 4")
    a(f"s_add_u32 s55, s55, {EG_OFF}")
    a(f"v_add_u32 v{T+3}, s55, v{T+3}")
    a(f"v_lshrrev_b32 v{T+5}, 5, v0")
    a(f"v_mul_u32_u24 v{T+5}, {180*2048}, v{T+5}")
    a(f"v_bfe_u32 v{T+6}, v0, 4, 1")
    a(f"v_lshl_add_u32 v{T+5}, v{T+6}, 10, v{T+5}")
    a(f"v_and_b32 v{T+6}, 15, v0")
    a(f"v_lshl_add_u32 v{T+5}, v{T+6}, 4, v{T+5}")
    a("s_lshl_b32 s56, s22, 3")
    a("s_lshl_b32 s57, s50, 1")
    a("s_add_u32 s56, s56, s57")
    a("s_mul_i32 s56, s56, 180")
    a("s_add_u32 s56, s56, 144")
    a("s_lshl_b32 s56, s56, 11")
    a(f"s_add_u32 s56, s56, {HF_OFF}")
    a("s_mul_i32 s55, s21, 9")
    a("s_add_u32 s55, s55, s51")
    def Rb(it): return ACC + 16*it
    for it in range(5):
        R = Rb(it)
        a(f"ds_read_b64 v[{R}:{R+1}], v{T+1} offset:{16*it}")
        a(f"ds_read_b64 v[{R+2}:{R+3}], v{T+1} offset:{16*it+72}")
        a(f"ds_read_b64 v[{R+4}:{R+5}], v{T+2} offset:{640*it+32}")
        a(f"ds_read_b64 v[{R+6}:{R+7}], v{T+2} offset:{640*it+192}")
        a(f"ds_read_b64 v[{R+12}:{R+13}], v{T+4} offset:{640*it+8}")
        a(f"ds_read_b64 v[{R+14}:{R+15}], v{T+4} offset:{640*it+168}")
        if it % 2 == 1: a("s_waitcnt lgkmcnt(0)")
    a("s_waitcnt lgkmcnt(0)")
    a("s_barrier")
    for it in range(5):
        R = Rb(it)
        a(f"ds_read_b128 v[{R+8}:{R+11}], v{T+3} offset:{32*it}")
    for it in range(5):
        R = Rb(it)
        if it == 4:
            a("s_cmp_eq_u32 s51, 1")
            a("s_cbranch_scc1 K1_fin_end")
        a(f"s_add_u32 s57, s55, {2*it}")
        a("s_lshr_b32 s58, s57, 3")
        a("s_lshl_b32 s58, s58, 11")
        a("s_add_u32 s58, s58, s56")
        a("s_and_b32 s59, s57, 3")
        a("s_lshl_b32 s59, s59, 8")
        a("s_add_u32 s58, s58, s59")
        a("s_bfe_u32 s59, s57, 0x10002")
        a("s_lshl_b32 s59, s59, 3")
        a("s_add_u32 s58, s58, s59")
        a(f"s_waitcnt lgkmcnt({4-it})")
        for e in range(2):
            gr, gi = R+e, R+2+e
            pr, pi = R+4+2*e, R+5+2*e
            fr, fi = R+8+2*e, R+9+2*e
            cr, ci = R+12+2*e, R+13+2*e
            a(f"v_fmac_f32 v{gr}, v{pr}, v{fr}")
            a(f"v_fmac_f32 v{gi}, v{pr}, v{fi}")
            a(f"v_fma_f32 v{gr}, -v{pi}, v{fi}, v{gr}")
            a(f"v_fmac_f32 v{gi}, v{pi}, v{fr}")
            a(f"v_mul_f32 v{pr}, v{cr}, v{gr}")
            a(f"v_mul_f32 v{pi}, v{cr}, v{gi}")
            a(f"v_fma_f32 v{pr}, -v{ci}, v{gi}, v{pr}")
            a(f"v_fmac_f32 v{pi}, v{ci}, v{gr}")
        a(f"v_cvt_pk_bf16_f32 v{R}, v{R+4}, v{R+5}")
        a(f"v_cvt_pk_bf16_f32 v{R+1}, v{R+6}, v{R+7}")
        a(f"buffer_store_dwordx2 v[{R}:{R+1}], v{T+5}, s[16:19], s58 offen sc1")
    a.label("K1_fin_end")
    stamp(3)
    a("s_waitcnt lgkmcnt(0)")
    a("s_barrier")
    a("s_cmp_lt_u32 s20, 4")
    a("s_cbranch_scc1 KM_p2")
    a("s_waitcnt vmcnt(0)")
    a("s_barrier")
    a("s_endpgm")
    a.label("KM_p2")
    a("s_mov_b32 s4, s10")
    a("s_mov_b32 s5, s11")
    a.vmq = []; a.lgq = []
    k2.setup(a)
    for st in range(4):
        for q in range(7): k2.dma(a, st, q)
    a("s_waitcnt vmcnt(28)")
    a("s_barrier")
    a("s_cmp_lg_u32 s20, 0")
    a("s_cbranch_scc1 KM_p2n")
    setflag(3, 88)
    a("s_mov_b32 exec_hi, 0")
    a("v_lshlrev_b32 v88, 8, v0")
    a("s_lshr_b32 s44, s22, 1")
    a("s_lshl_b32 s44, s44, 13")
    a(f"s_add_u32 s44, s44, {FLAG_OFF}")
    poll("KM_poll2", 88, "s44", 3, 89)
    a("s_mov_b64 exec, -1")
    a.label("KM_p2n")
    a("s_waitcnt vmcnt(0)")
    a("s_barrier")
    a.vmq = []
    stamp(4)
    nost = lambda n: None
    a("s_cmp_eq_u32 s25, 3")
    a("s_cbranch_scc1 K2_ssm")
    k2.body(a, 48, nost, hflag="sc1", pre_dma_done=True)
    a("s_branch K2_tail")
    a.label("K2_ssm")
    a.vmq = []; a.lgq = []
    k2.body(a, 36, nost, hflag="sc1", pre_dma_done=True)
    a.label("K2_tail")
    stamp(5)
    a("s_nop 7")
    k2.tail(a, nost, mega=(setflag, poll))
    if stamps:
        a("s_waitcnt vmcnt(0)")
        stamp(6)
        a("s_waitcnt lgkmcnt(0)")
        for n in range(1, 7):
            a(f"s_sub_u32 s{44+n}, s{82+2*n}, s82")
            a(f"v_mov_b32 v{16+n}, s{44+n}")
        a("v_mov_b32 v16, s82")
        a("s_lshl_b32 s36, s2, 2")
        a("s_add_u32 s36, s36, s20")
        a("s_lshl_b32 s36, s36, 5")
        a("s_add_u32 s36, s36, 0xF000000")
        a("v_mov_b32 v28, 0")
        a("buffer_store_dwordx4 v[16:19], v28, s[16:19], s36 offen")
        a("buffer_store_dwordx4 v[20:23], v28, s[16:19], s36 offen offset:16")
        a("s_waitcnt vmcnt(0)")
    a.label("K1_done")
    a("s_endpgm")
    return a.text(), kernel_desc(name, NARCH+NACC, NARCH)

if __name__ == "__main__":
    body, desc = gen_km(stamps=("stamps" in sys.argv))
    hdr_src = open("parallel_sum__ssm_conv_s5__swiglu_ffn__prompt.s.ref").read().split("\n")
    head = []
    for l in hdr_src:
        if "@launch" in l: continue
        if not l.startswith(";"): break
        head.append(l)
    head.append(f"; @launch grid=(256,1,1) block=(512,1,1) lds={KM_LDS}")
    out = "\n".join(head) + "\n.amdgcn_target \"amdgcn-amd-amdhsa--gfx950\"\n" + body + desc
    open(sys.argv[1], "w").write(out)
```

```python
from common import *
import sys
import k2
ACC = 16
SAC = 160
TMP = 184
NARCH = 200
XR = 0
FR = 24
NRING = 8
NACC = 56
NS = 3
SSTG = 4608
WBASE = NS*SSTG
STG = 36864
PD = 5
K1_LDS = WBASE + NS*STG
SL_OFF = 16384
SL_STR = 208
EG_OFF = SL_OFF + 256*SL_STR
PTL_OFF = K1_LDS
KM_LDS = k2.K2_LDS
LOG2E = 0x3fb8aa3b
INV2PI = 0x3e22f983
def acc_reg(i, j, m): return ACC + ((j*2 + i)*2 + m)*4
def sacc_reg(i, u): return SAC + (u*2 + i)*4
def rng(t, b, n=4): return f"{t}[{b}:{b+n-1}]"

def gen_km(name="parallel_sum__ssm_conv_s5__swiglu_ffn__prompt_kernel", stamps=False, pf_wd=True, split=False):
    HS = "" if split else "sc1"
    a = Asm()
    def stamp(n):
        if stamps:
            a(f"s_memrealtime s[{82+2*n}:{83+2*n}]")
    T = TMP
    a.raw(kernel_header(name))
    a("s_cmp_ge_u32 s2, 256")
    a("s_cbranch_scc1 K1_done")
    stamp(0)
    a("s_load_dwordx4 s[4:7], s[0:1], 80")
    a("s_load_dwordx2 s[8:9], s[0:1], 120")
    a("s_load_dwordx4 s[36:39], s[0:1], 24")
    a("s_load_dwordx2 s[10:11], s[0:1], 96")
    a("s_load_dwordx4 s[68:71], s[0:1], 0")
    a("s_load_dwordx2 s[72:73], s[0:1], 16")
    a("s_load_dwordx2 s[74:75], s[0:1], 56")
    a("s_load_dwordx4 s[76:79], s[0:1], 40")
    a("s_load_dwordx2 s[80:81], s[0:1], 112")
    a("v_lshrrev_b32 v15, 6, v0")
    a("v_and_b32 v0, 63, v0")
    a("v_readfirstlane_b32 s20, v15")
    a("v_lshlrev_b32 v1, 4, v0")
    a("s_and_b32 s21, s2, 7")
    a("s_lshr_b32 s22, s2, 3")
    a("s_and_b32 s23, s22, 3")
    a("s_lshl_b32 s21, s21, 2")
    a("s_add_u32 s21, s21, s23")
    a("s_lshr_b32 s22, s22, 2")
    a("s_waitcnt lgkmcnt(0)")
    a("s_cmp_gt_u32 s20, 1")
    a("s_cbranch_scc1 KM_noxl")
    srd(a, 48, 68, 2048*576*2)
    a("v_lshrrev_b32 v48, 4, v0")
    a("v_and_b32 v49, 15, v0")
    a("v_mul_u32_u24 v50, 1152, v48")
    a("v_lshl_add_u32 v50, v49, 3, v50")
    a("s_lshl_b32 s52, s22, 8")
    a("s_lshl_b32 s53, s21, 3")
    a("s_add_u32 s52, s52, s53")
    a("s_lshl_b32 s53, s20, 2")
    a("s_add_u32 s52, s52, s53")
    a("s_mul_i32 s53, s52, 1152")
    for i in range(9):
        a(f"buffer_load_dwordx2 v[{16+2*i}:{17+2*i}], v50, s[48:51], s53 offen offset:{i*128}")
    a.label("KM_noxl")
    a("s_and_b32 s23, s20, 3")
    a("s_lshl_b32 s23, s23, 4")
    a("s_mul_i32 s24, s21, 288")
    a("s_movk_i32 s25, 3641")
    a("s_movk_i32 s26, 9216")
    a("s_mul_i32 s27, s20, 4608")
    a(f"s_add_u32 s27, s27, {WBASE}")
    a("s_mul_i32 s29, s20, 576")
    a("s_lshl_b32 s28, s22, 3")
    a("s_add_u32 s28, s28, s20")
    a(f"s_mul_i32 s28, s28, {18*2048}")
    if XNF_OFF: a(f"s_add_u32 s28, s28, {XNF_OFF}")
    for q in range(5):
        d = 2+q
        if q: a(f"v_add_u32 v{T}, {q*64}, v0")
        else: a(f"v_mov_b32 v{T}, v0")
        a(f"v_mul_lo_u32 v{T+1}, v{T}, s25")
        a(f"v_lshrrev_b32 v{T+1}, 16, v{T+1}")
        a(f"v_mul_u32_u24 v{T+2}, 18, v{T+1}")
        a(f"v_sub_u32 v{T+2}, v{T}, v{T+2}")
        a(f"v_add_u32 v{T+1}, s23, v{T+1}")
        a(f"v_and_b32 v{T+3}, 0x23, v{T+1}")
        a(f"v_bfe_u32 v{T+4}, v{T+1}, 2, 2")
        a(f"v_lshl_add_u32 v{T+3}, v{T+4}, 3, v{T+3}")
        a(f"v_bfe_u32 v{T+4}, v{T+1}, 4, 1")
        a(f"v_lshl_add_u32 v{T+3}, v{T+4}, 2, v{T+3}")
        a(f"v_mul_lo_u32 v{T+3}, v{T+3}, s26")
        a(f"v_lshl_add_u32 v{T+3}, v{T+2}, 4, v{T+3}")
        a(f"v_add_u32 v{d}, s24, v{T+3}")
    a("s_mul_i32 s23, s20, 36")
    a(f"v_add_u32 v{T}, s23, v0")
    a(f"v_lshrrev_b32 v{T+1}, 3, v{T}")
    a(f"v_xor_b32 v{T+2}, v{T}, v{T+1}")
    a(f"v_and_b32 v{T+2}, 7, v{T+2}")
    a("s_mul_i32 s23, s21, 18")
    a("s_cmp_lt_u32 s20, 4")
    a("s_cselect_b32 s24, 0, 18")
    a("s_sub_u32 s23, s23, s24")
    a(f"v_add_u32 v{T+1}, s23, v{T+1}")
    a(f"v_mul_u32_u24 v{T+1}, 1152, v{T+1}")
    a(f"v_lshl_add_u32 v7, v{T+2}, 4, v{T+1}")
    a("s_waitcnt lgkmcnt(0)")
    a("s_cmp_lt_u32 s20, 4")
    a("s_cselect_b32 s12, s4, s6")
    a("s_cselect_b32 s13, s5, s7")
    a("s_cselect_b32 s40, s36, s38")
    a("s_cselect_b32 s41, s37, s39")
    a("s_and_b32 s13, s13, 0xffff")
    a(f"s_mov_b32 s14, {576*4608*2}")
    a("s_mov_b32 s15, 0x00020000")
    a("s_and_b32 s41, s41, 0xffff")
    a(f"s_mov_b32 s42, {576*576*2}")
    a("s_mov_b32 s43, 0x00020000")
    srd(a, 16, 8, WS_BYTES)
    srd(a, 44, 10, 4608*576*2)
    srd(a, 64, 80, 256)
    a("s_lshl_b32 s101, s2, 8")
    a(f"s_add_u32 s101, s101, {FLAG_OFF}")
    def setflag(val, t0=T+10):
        a("s_mov_b64 exec, 1")
        a(f"s_add_u32 s100, s3, {val}")
        a(f"v_mov_b32 v{t0}, s100")
        a(f"v_mov_b32 v{t0+1}, 0")
        a(f"buffer_store_dword v{t0}, v{t0+1}, s[16:19], s101 offen sc1")
        a("s_mov_b64 exec, -1")
    def poll(lbl, vaddr, soff, stage, t0):
        a.label(lbl)
        a(f"buffer_load_dword v{t0}, v{vaddr}, s[16:19], {soff} offen sc1")
        a(f"s_add_u32 s100, s3, {stage}")
        a("s_waitcnt vmcnt(0)")
        a(f"v_subrev_u32 v{t0}, s100, v{t0}")
        a(f"v_cmp_le_u32 vcc, {8-stage}, v{t0}")
        a("s_nop 4")
        a(f"s_cbranch_vccz {lbl}_ok")
        a("s_sleep 2")
        a(f"s_branch {lbl}")
        a.label(lbl + "_ok")

    def dma(stage, q):
        b = stage % NS
        if q < 5:
            a(f"s_add_u32 m0, s27, {b*STG + q*1024}")
            a(f"s_mov_b32 s30, {stage*64*9216}")
            if q == 4: a("s_mov_b32 exec_hi, 0")
            a.vm(f"buffer_load_dwordx4 v{2+q}, s[12:15], s30 offen lds", f"D{stage}")
            if q == 4: a("s_mov_b32 exec_hi, -1")
        else:
            a(f"s_add_u32 m0, s29, {b*SSTG}")
            a(f"s_movk_i32 s30, {stage*128}")
            a("s_mov_b32 exec_hi, 0xf")
            a.vm(f"buffer_load_dwordx4 v7, s[40:43], s30 offen lds", f"D{stage}")
            a("s_mov_b32 exec_hi, -1")
    def xload(ks, i):
        slot = ks % 3
        if i == 0:
            a(f"s_add_u32 s31, s28, {ks*2048}")
        a.vm(f"buffer_load_dwordx4 {rng('a', XR + slot*8 + i*4)}, v1, s[16:19], s31 offen offset:{i*1024}", f"X{ks}")
    NF = 21
    def fread(f):
        ks, n = divmod(f, NF)
        stage, sub = divmod(ks, 2)
        b = stage % NS
        dst = FR + (f % NRING)*4
        if n < 18:
            j, m = divmod(n, 2)
            off = m*18432 + sub*9216 + j*32
            a.lg(f"ds_read_b64_tr_b16 {rng('a', dst, 2)}, v{11+b} offset:{off}", f"F{f}")
            a.lg(f"ds_read_b64_tr_b16 {rng('a', dst+2, 2)}, v{11+b} offset:{off+4608}", f"F{f}")
        else:
            u = n - 18
            areg = (8 + sub) if u < 2 else (T+12+sub)
            a.lg(f"ds_read_b128 {rng('a', dst)}, v{areg} offset:{b*SSTG + (2048 if u == 1 else 0)}", f"F{f}")

    def cst():
        a("s_sub_u32 s52, s20, 2")
        a("s_lshl_b32 s52, s52, 6")
        a("v_add_u32 v40, s52, v0")
        a(f"s_mov_b32 s57, {CST_OFF}")
        a("s_mov_b32 s58, 7456541")
        a("s_mul_i32 s59, s2, 324")
        for rnd in range(2):
            B = 16 + rnd*12
            a(f"v_add_u32 v41, {rnd*192}, v40")
            a("v_min_u32 v41, 323, v41")
            a("v_add_u32 v41, s59, v41")
            a("v_mul_hi_u32 v42, v41, s58")
            a("v_mul_u32_u24 v43, 576, v42")
            a("v_sub_u32 v43, v41, v43")
            a("v_cmp_le_u32 vcc, 72, v42")
            a("v_subrev_u32 v44, 72, v42")
            a("v_mov_b32 v46, s76")
            a("v_mov_b32 v47, s77")
            a("v_mov_b32 v48, s78")
            a("v_mov_b32 v49, s79")
            a("v_cndmask_b32 v44, v42, v44, vcc")
            a("v_cndmask_b32 v46, v46, v48, vcc")
            a("v_cndmask_b32 v47, v47, v49, vcc")
            a(f"v_mov_b32 v{B+9}, 0x80008000")
            a(f"v_cndmask_b32 v{B+9}, 0, v{B+9}, vcc")
            a("v_mul_u32_u24 v45, 9216, v44")
            a("v_lshl_add_u32 v45, v43, 1, v45")
            a("v_lshlrev_b32 v50, 1, v43")
            a("v_add_u32 v51, 1, v50")
            a("v_cndmask_b32 v50, v50, v51, vcc")
            a("v_mul_u32_u24 v50, 1152, v50")
            a(f"v_lshl_add_u32 v{B+8}, v44, 4, v50")
            a("v_add_co_u32 v46, vcc, v46, v45")
            a("s_nop 1")
            a("v_addc_co_u32 v47, vcc, 0, v47, vcc")
            a("v_add_co_u32 v48, vcc, 4608, v46")
            a("s_nop 1")
            a("v_addc_co_u32 v49, vcc, 0, v47, vcc")
            for e in range(8):
                base = "v[46:47]" if e < 4 else "v[48:49]"
                a(f"global_load_ushort v{B+e}, {base}, off offset:{(e%4)*1152}")
        a("s_waitcnt vmcnt(0)")
        for rnd in range(2):
            B = 16 + rnd*12
            for r in range(4):
                a(f"v_lshl_or_b32 v{52+4*rnd+r}, v{B+1+2*r}, 16, v{B+2*r}")
                a(f"v_xor_b32 v{52+4*rnd+r}, v{B+9}, v{52+4*rnd+r}")
            a(f"buffer_store_dwordx4 v[{52+4*rnd}:{55+4*rnd}], v{B+8}, s[16:19], s57 offen sc1")
    def phase0():
        a("s_cmp_gt_u32 s20, 1")
        a("s_cbranch_scc1 KM_r1")
        a("s_lshl_b32 s52, s22, 8")
        a("s_lshl_b32 s53, s21, 3")
        a("s_add_u32 s52, s52, s53")
        a("s_lshl_b32 s53, s20, 2")
        a("s_add_u32 s52, s52, s53")
        a("v_add_u32 v36, s52, v48")
        a("v_lshrrev_b32 v37, 5, v36")
        a(f"v_mul_u32_u24 v37, {18*2048}, v37")
        a("v_bfe_u32 v38, v36, 4, 1")
        a("v_lshl_add_u32 v37, v38, 10, v37")
        a("v_and_b32 v38, 15, v36")
        a("v_lshl_add_u32 v37, v38, 4, v37")
        a("v_lshrrev_b32 v38, 3, v49")
        a("v_lshl_add_u32 v37, v38, 11, v37")
        a("v_bfe_u32 v38, v49, 1, 2")
        a("v_lshl_add_u32 v37, v38, 8, v37")
        a("v_and_b32 v38, 1, v49")
        a("v_lshl_add_u32 v37, v38, 3, v37")
        a("v_mov_b32 v38, 0x3f803f80")
        a("v_mov_b32 v34, 0")
        a("v_mov_b32 v35, 0")
        a("s_waitcnt vmcnt(0)")
        for i in range(18):
            d = 34 + (i & 1)
            a(f"v_dot2_f32_bf16 v{d}, v{16+i}, v38, v{d}")
        a("s_nop 2")
        a("v_add_f32 v34, v34, v35")
        def red(v):
            for sh in (8, 4, 2, 1):
                a("s_nop 1")
                a(f"v_add_f32_dpp v{v}, v{v}, v{v} row_ror:{sh} row_mask:0xf bank_mask:0xf")
        red(34)
        a("v_mul_f32 v34, 0x3ae38e39, v34")
        a("v_mov_b32 v35, 0")
        a("v_mov_b32 v36, 0")
        for i in range(18):
            t = 40 + 2*(i & 3)
            a(f"v_lshlrev_b32 v{t}, 16, v{16+i}")
            a(f"v_and_b32 v{t+1}, 0xffff0000, v{16+i}")
            a(f"v_sub_f32 v{t}, v{t}, v34")
            a(f"v_sub_f32 v{t+1}, v{t+1}, v34")
            a(f"v_fmac_f32 v35, v{t}, v{t}")
            a(f"v_fmac_f32 v36, v{t+1}, v{t+1}")
        a("v_add_f32 v35, v35, v36")
        red(35)
        a("v_mul_f32 v35, 0x3ae38e39, v35")
        a("v_cvt_pk_bf16_f32 v34, 0, v34")
        a("v_cvt_pk_bf16_f32 v35, 0, v35")
        a("v_add_f32 v35, 0x3727c5ac, v35")
        a("v_cvt_pk_bf16_f32 v35, 0, v35")
        a("v_sqrt_f32 v35, v35")
        a("s_nop 0")
        a("v_cvt_pk_bf16_f32 v35, 0, v35")
        a("v_rcp_f32 v35, v35")
        a("s_nop 0")
        for i in range(18):
            t = 40 + 2*(i & 3)
            a(f"v_lshlrev_b32 v{t}, 16, v{16+i}")
            a(f"v_and_b32 v{t+1}, 0xffff0000, v{16+i}")
            a(f"v_sub_f32 v{t}, v{t}, v34")
            a(f"v_sub_f32 v{t+1}, v{t+1}, v34")
            a(f"v_cvt_pk_bf16_f32 v{t}, 0, v{t}")
            a(f"v_cvt_pk_bf16_f32 v{t+1}, 0, v{t+1}")
            a(f"v_mul_f32 v{t}, v{t}, v35")
            a(f"v_mul_f32 v{t+1}, v{t+1}, v35")
            a(f"v_cvt_pk_bf16_f32 v{16+i}, v{t}, v{t+1}")
            if i & 1:
                a(f"s_mov_b32 s53, {XNF_OFF + (i//2)*4096}")
                a(f"buffer_store_dwordx2 v[{16+i-1}:{16+i}], v37, s[16:19], s53 offen sc1")
        a("s_waitcnt vmcnt(0)")
        a("s_branch KM_r_end")
        a.label("KM_r1")
        a("s_cmp_gt_u32 s20, 4")
        a("s_cbranch_scc1 KM_r2")
        cst()
        a("s_branch KM_r_end")
        a.label("KM_r2")
        a("s_cmp_lg_u32 s20, 6")
        a("s_cbranch_scc1 KM_r3")
        a("s_memrealtime s[52:53]")
        a("s_waitcnt lgkmcnt(0)")
        a("s_lshl_b32 s52, s52, 3")
        a("s_or_b32 s52, s52, 8")
        a("s_mov_b64 exec, 1")
        a("v_mov_b32 v16, s52")
        a("v_mov_b32 v17, 0")
        a("v_mov_b32 v18, 0")
        a("v_mov_b32 v19, s52")
        a("buffer_atomic_cmpswap v[16:17], v18, s[64:67], 0 offen sc0")
        a("s_waitcnt vmcnt(0)")
        a("v_cmp_eq_u32 vcc, 0, v16")
        a("s_nop 1")
        a("v_cndmask_b32 v16, v16, v19, vcc")
        a(f"v_mov_b32 v18, {PTL_OFF + 2880}")
        a("ds_write_b32 v18, v16")
        a("s_mov_b64 exec, -1")
        a("s_branch KM_r_end")
        a.label("KM_r3")
        a("s_cmp_lg_u32 s20, 5")
        a("s_cbranch_scc1 KM_r_end")
        a("s_mul_i32 s52, s21, 18")
        a("v_min_u32 v16, 17, v0")
        a("v_add_u32 v17, s52, v16")
        a("v_lshlrev_b32 v17, 1, v17")
        a("global_load_ushort v18, v17, s[70:71]")
        a("global_load_ushort v19, v17, s[72:73]")
        a("global_load_ushort v20, v17, s[74:75]")
        a("s_waitcnt vmcnt(0)")
        a("v_lshlrev_b32 v18, 16, v18")
        a("v_lshlrev_b32 v19, 16, v19")
        a("v_lshlrev_b32 v20, 16, v20")
        a(f"v_mul_f32 v20, {LOG2E}, v20")
        a("v_exp_f32 v20, v20")
        a("s_nop 0")
        a("v_cvt_pk_bf16_f32 v20, 0, v20")
        a("v_mul_f32 v21, v20, v18")
        a("v_mul_f32 v22, v20, v19")
        a(f"v_mul_f32 v21, {LOG2E}, v21")
        a(f"v_mul_f32 v22, {INV2PI}, v22")
        a("v_exp_f32 v21, v21")
        a("v_fract_f32 v22, v22")
        a("s_nop 0")
        a("v_cos_f32 v23, v22")
        a("v_sin_f32 v24, v22")
        a("s_nop 0")
        a("v_mul_f32 v64, v21, v23")
        a("v_mul_f32 v65, v21, v24")
        a("v_add_f32 v25, -1.0, v64")
        a("v_mul_f32 v26, v18, v18")
        a("v_fmac_f32 v26, v19, v19")
        a("v_rcp_f32 v27, v26")
        a("v_mul_f32 v66, v25, v18")
        a("v_fmac_f32 v66, v65, v19")
        a("v_mul_f32 v67, v65, v18")
        a("v_fma_f32 v67, -v25, v19, v67")
        a("v_fma_f32 v28, -v26, v27, 1.0")
        a("v_fmac_f32 v27, v28, v27")
        a("v_add_f32 v27, v27, v27")
        a("v_mul_f32 v66, v66, v27")
        a("v_mul_f32 v67, v67, v27")
        a("v_mov_b32 v72, v64")
        a("v_mov_b32 v73, v65")
        def cmul(d, x, y):
            a(f"v_mul_f32 v{d}, v{x}, v{y}")
            a(f"v_mul_f32 v{d+1}, v{x}, v{y+1}")
            a(f"v_fma_f32 v{d}, -v{x+1}, v{y+1}, v{d}")
            a(f"v_fmac_f32 v{d+1}, v{x+1}, v{y}")
        for j in range(1, 16):
            cmul(72+2*j, 64, 70+2*j)
        a("v_mov_b32 v68, v102")
        a("v_mov_b32 v69, v103")
        cmul(30, 68, 68); cmul(32, 30, 30); cmul(30, 32, 32); cmul(70, 30, 30)
        a("v_mul_u32_u24 v17, 160, v16")
        a(f"v_add_u32 v17, {PTL_OFF}, v17")
        a("v_cmp_gt_u32 vcc, 18, v0")
        a("s_and_saveexec_b64 s[60:61], vcc")
        for q in range(10):
            a(f"ds_write_b128 v17, v[{64+4*q}:{67+4*q}] offset:{q*16}")
        a("s_mov_b64 exec, s[60:61]")
        a.label("KM_r_end")
    def dma01():
        for q in range(6): dma(0, q)
        for q in range(6): dma(1, q)
    a("s_bitcmp1_b32 0x63, s20")
    a("s_cbranch_scc1 KM_nodma")
    dma01()
    a.label("KM_nodma")
    a(f"v_lshrrev_b32 v{T}, 2, v0")
    a(f"v_mul_u32_u24 v{T}, 288, v{T}")
    a(f"v_and_b32 v{T+1}, 3, v0")
    a(f"v_lshl_add_u32 v11, v{T+1}, 3, v{T}")
    a(f"v_add_u32 v11, {WBASE}, v11")
    for b in range(1, NS):
        a(f"v_add_u32 v{11+b}, {b*STG}, v11")
    a(f"v_and_b32 v{T}, 15, v0")
    a(f"v_lshrrev_b32 v{T+1}, 4, v0")
    a(f"v_xor_b32 v{T+2}, v{T}, v{T+1}")
    a(f"v_and_b32 v{T+2}, 7, v{T+2}")
    a(f"v_lshlrev_b32 v8, 7, v{T}")
    a(f"v_lshl_add_u32 v8, v{T+2}, 4, v8")
    a("v_xor_b32 v9, 64, v8")
    a(f"v_and_b32 v{T+3}, 3, v0")
    a(f"v_xor_b32 v{T+2}, v{T+3}, v{T+1}")
    a(f"v_lshlrev_b32 v{T+12}, 7, v{T+3}")
    a(f"v_lshl_add_u32 v{T+12}, v{T+2}, 4, v{T+12}")
    a(f"v_add_u32 v{T+12}, 4096, v{T+12}")
    a(f"v_xor_b32 v{T+13}, 64, v{T+12}")
    a("s_and_b32 s23, s20, 3")
    a("s_mul_i32 s23, s23, 36")
    a(f"v_add_u32 v{T}, s23, v0")
    a(f"v_mul_u32_u24 v{T+1}, 3641, v{T}")
    a(f"v_lshrrev_b32 v{T+1}, 16, v{T+1}")
    a(f"v_mul_u32_u24 v{T+2}, 18, v{T+1}")
    a(f"v_sub_u32 v{T+2}, v{T}, v{T+2}")
    a("s_lshl_b32 s23, s22, 3")
    a(f"v_add_u32 v{T+1}, s23, v{T+1}")
    a(f"v_mul_lo_u32 v{T+1}, v{T+1}, s26")
    a(f"v_lshl_add_u32 v{T+1}, v{T+2}, 4, v{T+1}")
    a("s_mul_i32 s24, s21, 288")
    a(f"v_add_u32 v14, s24, v{T+1}")
    def wpf(stage):
        a(f"s_mov_b32 s49, {stage*64*9216}")
        a("s_mov_b32 exec_hi, 0xf")
        a.vm(f"buffer_load_dwordx4 v[{T+4}:{T+7}], v14, s[12:15], s49 offen", "PF")
        a("s_mov_b32 exec_hi, -1")
    a("s_bitcmp1_b32 0x63, s20")
    a("s_cbranch_scc1 KM_nopf0")
    for st in (2, 3): wpf(st)
    a.label("KM_nopf0")
    a("s_mul_i32 s49, s21, 18")
    a(f"v_add_u32 v{T+9}, s49, v0")
    a(f"v_lshlrev_b32 v{T+9}, 3, v{T+9}")
    a(f"v_lshl_add_u32 v10, s20, 10, v1")
    a("s_mul_i32 s48, s2, 20736")
    a("s_add_u32 s46, s48, 20736")
    phase0()
    a("s_waitcnt lgkmcnt(0)")
    stamp(7)
    a("s_barrier")
    stamp(8)
    a(f"v_mov_b32 v{T}, {PTL_OFF + 2880}")
    a(f"ds_read_b32 v{T+1}, v{T}")
    a("s_waitcnt lgkmcnt(0)")
    a(f"v_readfirstlane_b32 s3, v{T+1}")
    a("s_nop 3")
    a("s_cmp_lg_u32 s20, 7")
    a("s_cbranch_scc1 KM_p0wait")
    setflag(1)
    a("s_mov_b32 exec_hi, 0")
    a(f"v_lshlrev_b32 v{T}, 8, v0")
    a("s_lshl_b32 s49, s22, 13")
    a(f"s_add_u32 s49, s49, {FLAG_OFF}")
    poll("KM_poll0", T, "s49", 1, T+1)
    a("s_mov_b64 exec, -1")
    a.label("KM_p0wait")
    a("s_bitcmp0_b32 0x63, s20")
    a("s_cbranch_scc1 KM_p0b")
    a.vmq = []
    dma01()
    for st in (2, 3): wpf(st)
    a("s_branch KM_p0c")
    a.label("KM_p0b")
    a.label("KM_p0c")
    if stamps: a("s_memrealtime s[78:79]")
    a("s_mul_i32 s48, s2, 20736")
    a.wait_all()
    a("s_barrier")
    for ks0 in range(2):
        for i in range(2): xload(ks0, i)
    stamp(1)
    TOT = 18*NF
    for f in range(PD): fread(f)
    pend = []
    pf_left = 3 if pf_wd else 0
    for f in range(TOT):
        ks, n = divmod(f, NF)
        fill = []
        if (f+PD) % (2*NF) == 0 and f+PD < TOT:
            s1 = (f+PD)//(2*NF)
            a.wait(vm=f"D{s1}")
            a("s_barrier")
            if s1+1 <= 8:
                pend = [(s1+1, q) for q in range(6)]
        if f+PD < TOT:
            fill.append(lambda: fread(f+PD))
        if n == 0 and ks+2 < 18:
            for i in range(2):
                fill.append(lambda i=i: xload(ks+2, i))
        elif pend and n % 2 == 1:
            st, q = pend.pop(0)
            fill.append(lambda st=st, q=q: dma(st, q))
        elif n == 14 and ks % 2 == 0 and ks//2 + 4 <= 8:
            fill.append(lambda: wpf(ks//2 + 4))
        elif pf_left and ks >= 4 and n == 10:
            k = 3 - pf_left; pf_left -= 1
            def pf(k=k):
                a(f"s_add_u32 s49, s48, {k*8192}")
                a.vm(f"buffer_load_dwordx4 v[{T+4}:{T+7}], v10, s[44:47], s49 offen", "PF")
            fill.append(pf)
        if n == 0:
            a.wait(vm=f"X{ks}", lg=f"F{f}")
        else:
            a.wait(lg=f"F{f}")
        slot = ks % 3
        src = rng('a', FR + (f % NRING)*4)
        for i in range(2):
            r = acc_reg(i, n//2, n % 2) if n < 18 else sacc_reg(i, n-18)
            xsrc = rng('a', XR + slot*8 + i*4)
            c = "0" if ks == 0 else rng('v', r)
            a(f"v_mfma_f32_16x16x32_bf16 {rng('v', r)}, {src}, {xsrc}, {c}")
            if fill: fill.pop(0)()
        while fill: fill.pop(0)()
    stamp(2)
    a("s_barrier")
    a(f"v_and_b32 v{T+1}, 15, v0")
    a(f"v_lshrrev_b32 v{T+2}, 4, v0")
    a(f"v_mul_u32_u24 v{T+1}, {SL_STR}, v{T+1}")
    a(f"v_lshl_add_u32 v{T+1}, v{T+2}, 4, v{T+1}")
    a(f"s_mul_i32 s49, s20, {32*SL_STR}")
    a(f"s_add_u32 s49, s49, {SL_OFF}")
    a(f"v_add_u32 v{T+1}, s49, v{T+1}")
    for i in range(2):
        for u in range(3):
            a(f"ds_write_b128 v{T+1}, {rng('v', sacc_reg(i,u))} offset:{i*16*SL_STR + u*64}")
    a("s_waitcnt lgkmcnt(0)")
    a("s_barrier")
    a("s_lshl_b32 s32, s22, 3")
    a("s_add_u32 s32, s32, s20")
    a("s_mul_i32 s32, s32, 180")
    a("s_mul_i32 s33, s21, 9")
    a("s_lshr_b32 s33, s33, 1")
    a("s_add_u32 s32, s32, s33")
    a("s_lshl_b32 s32, s32, 11")
    a(f"s_add_u32 s32, s32, {HF_OFF}")
    a("s_mov_b32 s60, 0xbfb8aa3b")
    a("s_mov_b32 s61, 0xbfb8aa3b")
    a("s_mov_b32 s62, 1.0")
    a("s_mov_b32 s63, 1.0")
    a("s_and_b32 s33, s21, 1")

    def act(i, j, dst):
        g = acc_reg(i, j, 0); u = acc_reg(i, j, 1)
        for r in range(4): a(f"v_cvt_pk_bf16_f32 v{g+r}, 0, v{g+r}")
        for r in (0, 2): a(f"v_pk_mul_f32 v[{T+r}:{T+r+1}], v[{g+r}:{g+r+1}], s[60:61]")
        for r in range(4): a(f"v_exp_f32 v{T+r}, v{T+r}")
        for r in range(4): a(f"v_cvt_pk_bf16_f32 v{u+r}, 0, v{u+r}")
        for r in (0, 2): a(f"v_pk_add_f32 v[{T+r}:{T+r+1}], v[{T+r}:{T+r+1}], s[62:63]")
        for r in range(4): a(f"v_rcp_f32 v{T+r}, v{T+r}")
        a("s_nop 0")
        for r in (0, 2): a(f"v_pk_mul_f32 v[{T+r}:{T+r+1}], v[{g+r}:{g+r+1}], v[{T+r}:{T+r+1}]")
        for r in range(4): a(f"v_cvt_pk_bf16_f32 v{T+r}, 0, v{T+r}")
        for r in (0, 2): a(f"v_pk_mul_f32 v[{T+r}:{T+r+1}], v[{T+r}:{T+r+1}], v[{u+r}:{u+r+1}]")
        a(f"v_cvt_pk_bf16_f32 v{dst}, v{T}, v{T+1}")
        a(f"v_cvt_pk_bf16_f32 v{dst+1}, v{T+2}, v{T+3}")
    def group(gi):
        lo, le = a.newlabel("K1_g_odd"), a.newlabel("K1_g_end")
        a(f"s_add_u32 s35, s32, {gi*2048}")
        a("s_cmp_eq_u32 s33, 1")
        a(f"s_cbranch_scc1 {lo}")
        for odd in (False, True):
            if odd: a.label(lo)
            if not odd: js = [(0,1), (2,3), (4,5), (6,7), (8,)][gi]
            else: js = [(0,), (1,2), (3,4), (5,6), (7,8)][gi]
            for i in range(2):
                d0 = acc_reg(i, js[0], 0)
                if len(js) == 2:
                    act(i, js[0], d0); act(i, js[1], d0+2)
                    a(f"buffer_store_dwordx4 v[{d0}:{d0+3}], v1, s[16:19], s35 offen offset:{i*1024} {HS}")
                else:
                    act(i, js[0], d0)
                    a(f"buffer_store_dwordx2 v[{d0}:{d0+1}], v1, s[16:19], s35 offen offset:{i*1024 + (8 if odd else 0)} {HS}")
            if not odd: a(f"s_branch {le}")
        a.label(le)
    S = SAC
    a("s_cmp_gt_u32 s20, 4")
    a("s_cbranch_scc1 K1_noscan")
    a(f"v_lshl_add_u32 v{T}, s20, 6, v0")
    a(f"v_cmp_gt_u32 vcc, 288, v{T}")
    a("s_and_saveexec_b64 s[50:51], vcc")
    a(f"v_mul_u32_u24 v{T+1}, 3641, v{T}")
    a(f"v_lshrrev_b32 v{T+1}, 16, v{T+1}")
    a(f"v_mul_u32_u24 v{T+2}, 18, v{T+1}")
    a(f"v_sub_u32 v{T+2}, v{T}, v{T+2}")
    a(f"v_mul_u32_u24 v{T+3}, 160, v{T+2}")
    a(f"v_add_u32 v{T+3}, {PTL_OFF}, v{T+3}")
    a(f"ds_read_b64 v[{T+4}:{T+5}], v{T+3}")
    a(f"v_mul_u32_u24 v{T+6}, {16*SL_STR}, v{T+1}")
    a(f"v_lshl_add_u32 v{T+6}, v{T+2}, 2, v{T+6}")
    a(f"v_add_u32 v{T+6}, {SL_OFF}, v{T+6}")
    a(f"v_mov_b32 v{S+16}, 0")
    a(f"v_mov_b32 v{S+17}, 0")
    for hb in range(2):
        for t in range(8):
            tt = hb*8 + t
            a(f"ds_read_b32 v{S+2*t}, v{T+6} offset:{tt*SL_STR}")
            if t == 6: a("s_waitcnt lgkmcnt(8)")
            a(f"ds_read_b32 v{S+2*t+1}, v{T+6} offset:{tt*SL_STR + 72}")
        a("s_waitcnt lgkmcnt(0)")
        for t in range(8):
            r = S+2*t
            pr = (S+16) if t == 0 else (S+2*t-2)
            if hb == 0 and t == 0: continue
            a(f"v_fma_f32 v{r}, -v{T+5}, v{pr+1}, v{r}")
            a(f"v_fmac_f32 v{r+1}, v{T+5}, v{pr}")
            a(f"v_fmac_f32 v{r}, v{T+4}, v{pr}")
            a(f"v_fmac_f32 v{r+1}, v{T+4}, v{pr+1}")
        for t in range(8):
            tt = hb*8 + t
            if tt == 0: continue
            a(f"ds_write_b32 v{T+6}, v{S+2*t} offset:{tt*SL_STR}")
            a(f"ds_write_b32 v{T+6}, v{S+2*t+1} offset:{tt*SL_STR + 72}")
        if hb == 0:
            a(f"v_mov_b32 v{S+16}, v{S+14}")
            a(f"v_mov_b32 v{S+17}, v{S+15}")
            a("s_waitcnt lgkmcnt(0)")
    a(f"v_lshlrev_b32 v{T+7}, 3, v{T}")
    a(f"v_add_u32 v{T+7}, {EG_OFF}, v{T+7}")
    a(f"ds_write_b64 v{T+7}, v[{S+14}:{S+15}]")
    a("s_mov_b64 exec, s[50:51]")
    a.label("K1_noscan")
    a("s_cmp_eq_u32 s20, 0")
    a("s_cbranch_scc1 KM_skipg0")
    group(0)
    a.label("KM_skipg0")
    a("s_waitcnt lgkmcnt(0)")
    a("s_barrier")
    a("s_cmp_lg_u32 s20, 0")
    a("s_cbranch_scc1 K1_nopfx")
    a("v_cmp_gt_u32 vcc, 18, v0")
    a("s_and_saveexec_b64 s[50:51], vcc")
    a(f"v_mul_u32_u24 v{T+3}, 160, v0")
    a(f"v_add_u32 v{T+3}, {PTL_OFF}, v{T+3}")
    a(f"ds_read_b128 v[{T+4}:{T+7}], v{T+3} offset:16")
    a(f"v_lshlrev_b32 v{T+8}, 3, v0")
    a(f"v_add_u32 v{T+8}, {EG_OFF}, v{T+8}")
    def cfma(d, m, x, e):
        if d != e:
            a(f"v_fma_f32 v{d}, v{m}, v{x}, v{e}")
            a(f"v_fma_f32 v{d+1}, v{m}, v{x+1}, v{e+1}")
        else:
            a(f"v_fmac_f32 v{d}, v{m}, v{x}")
            a(f"v_fmac_f32 v{d+1}, v{m}, v{x+1}")
        a(f"v_fma_f32 v{d}, -v{m+1}, v{x+1}, v{d}")
        a(f"v_fmac_f32 v{d+1}, v{m+1}, v{x}")
    for sg in range(8):
        a(f"ds_read_b64 v[{S+2*sg}:{S+2*sg+1}], v{T+8} offset:{sg*144}")
    a("s_waitcnt lgkmcnt(0)")
    for sg in range(1, 8):
        cfma(S+2*sg, T+4, S+2*sg-2, S+2*sg)
    a(f"v_mov_b32 v{S+16}, v{S+14}")
    a(f"v_mov_b32 v{S+17}, v{S+15}")
    for sg in range(8):
        a(f"ds_read_b64 v[{S+2*sg}:{S+2*sg+1}], v{T+8} offset:{(8+sg)*144}")
    a("s_waitcnt lgkmcnt(0)")
    cfma(S, T+4, S+16, S)
    for sg in range(1, 8):
        cfma(S+2*sg, T+4, S+2*sg-2, S+2*sg)
    a(f"s_mul_i32 s52, s22, {576*8}")
    a(f"s_add_u32 s52, s52, {AGG_OFF}")
    a(f"buffer_store_dwordx2 v[{S+14}:{S+15}], v{T+9}, s[16:19], s52 offen sc1")
    a("s_waitcnt vmcnt(0)")
    setflag(2)
    group(0)
    a.label("K1_nopfx")
    group(1)
    group(2)
    a("s_cmp_lg_u32 s20, 0")
    a("s_cbranch_scc1 K1_nopfx2")
    a(f"v_mov_b32 v{S+16}, 0")
    a(f"v_mov_b32 v{S+17}, 0")
    a("s_cmp_eq_u32 s22, 0")
    a("s_cbranch_scc1 K1_nogather")
    a("v_cmp_gt_u32 vcc, s22, v0")
    a("s_and_saveexec_b64 s[50:51], vcc")
    a(f"v_lshlrev_b32 v{T+10}, 13, v0")
    a("s_and_b32 s53, s2, 31")
    a("s_lshl_b32 s53, s53, 8")
    a(f"s_add_u32 s53, s53, {FLAG_OFF}")
    poll("K1_poll", T+10, "s53", 2, T+11)
    a.label("K1_polled")
    a("s_mov_b64 exec, s[50:51]")
    a("v_cmp_gt_u32 vcc, 18, v0")
    a("s_and_saveexec_b64 s[50:51], vcc")
    a(f"s_mov_b32 s52, {AGG_OFF}")
    for m in range(7):
        a(f"s_cmp_le_u32 s22, {m}")
        a("s_cbranch_scc1 K1_gld")
        a(f"buffer_load_dwordx2 v[{S+2*m}:{S+2*m+1}], v{T+9}, s[16:19], s52 offen sc1")
        a(f"s_add_u32 s52, s52, {576*8}")
    a.label("K1_gld")
    a("s_waitcnt vmcnt(0)")
    for m in range(7):
        a(f"s_cmp_le_u32 s22, {m}")
        a("s_cbranch_scc1 K1_gdn")
        cfma(S+2*m, T+6, S+16, S+2*m)
        a(f"v_mov_b32 v{S+16}, v{S+2*m}")
        a(f"v_mov_b32 v{S+17}, v{S+2*m+1}")
    a.label("K1_gdn")
    a("s_mov_b64 exec, s[50:51]")
    a.label("K1_nogather")
    a("v_cmp_gt_u32 vcc, 18, v0")
    a("s_and_saveexec_b64 s[50:51], vcc")
    for hb in range(2):
        for sg in range(8):
            a(f"ds_read_b64 v[{S+2*sg}:{S+2*sg+1}], v{T+8} offset:{(hb*8+sg)*144}")
        a("s_waitcnt lgkmcnt(0)")
        for sg in range(8):
            prev = (S+16) if sg == 0 else (S+2*sg-2)
            a(f"ds_write_b64 v{T+8}, v[{prev}:{prev+1}] offset:{(hb*8+sg)*144}")
            cfma(S+2*sg, T+4, prev, S+2*sg)
        a(f"v_mov_b32 v{S+16}, v{S+14}")
        a(f"v_mov_b32 v{S+17}, v{S+15}")
        a("s_waitcnt lgkmcnt(0)")
    a("s_mov_b64 exec, s[50:51]")
    a.label("K1_nopfx2")
    group(3)
    group(4)
    if split:
        a("s_cmp_lg_u32 s20, 1")
        a("s_cbranch_scc1 KM_nochk")
        a("s_mov_b64 exec, 1")
        a(f"v_mov_b32 v{T+4}, 0")
        a("s_lshl_b32 s49, s2, 2")
        a(f"s_add_u32 s49, s49, {FLAG2_OFF}")
        a(f"buffer_store_dword v{T+4}, v{T+4}, s[16:19], s49 offen")
        a("s_mov_b64 exec, -1")
        a("s_branch KM_nochk")
    a("s_cmp_lg_u32 s20, 1")
    a("s_cbranch_scc1 KM_nochk")
    a(f"v_lshlrev_b32 v{T+4}, 8, v0")
    for qq in range(4):
        a(f"s_mov_b32 s49, {FLAG_OFF + qq*16384}")
        poll(f"KM_pollc{qq}", T+4, "s49", 2, T+5)
    a.label("KM_nochk")
    a("s_lshr_b32 s50, s20, 1")
    a("s_and_b32 s51, s20, 1")
    a("s_lshl_b32 s52, s50, 6")
    a(f"v_add_u32 v{T}, s52, v0")
    a(f"v_mul_u32_u24 v{T+1}, {SL_STR}, v{T}")
    a("s_lshl_b32 s53, s51, 3")
    a(f"s_add_u32 s54, s53, {SL_OFF}")
    a(f"v_add_u32 v{T+1}, s54, v{T+1}")
    a(f"v_and_b32 v{T+2}, 15, v0")
    a(f"v_lshlrev_b32 v{T+2}, 3, v{T+2}")
    a("s_mul_i32 s54, s51, 320")
    a(f"s_add_u32 s54, s54, {PTL_OFF}")
    a(f"v_add_u32 v{T+2}, s54, v{T+2}")
    a(f"v_mov_b32 v{T+4}, s54")
    a(f"v_lshrrev_b32 v{T+3}, 4, v{T}")
    a(f"v_mul_u32_u24 v{T+3}, 144, v{T+3}")
    a("s_lshl_b32 s55, s51, 4")
    a(f"s_add_u32 s55, s55, {EG_OFF}")
    a(f"v_add_u32 v{T+3}, s55, v{T+3}")
    a(f"v_lshrrev_b32 v{T+5}, 5, v0")
    a(f"v_mul_u32_u24 v{T+5}, {180*2048}, v{T+5}")
    a(f"v_bfe_u32 v{T+6}, v0, 4, 1")
    a(f"v_lshl_add_u32 v{T+5}, v{T+6}, 10, v{T+5}")
    a(f"v_and_b32 v{T+6}, 15, v0")
    a(f"v_lshl_add_u32 v{T+5}, v{T+6}, 4, v{T+5}")
    a("s_lshl_b32 s56, s22, 3")
    a("s_lshl_b32 s57, s50, 1")
    a("s_add_u32 s56, s56, s57")
    a("s_mul_i32 s56, s56, 180")
    a("s_add_u32 s56, s56, 144")
    a("s_lshl_b32 s56, s56, 11")
    a(f"s_add_u32 s56, s56, {HF_OFF}")
    a("s_mul_i32 s55, s21, 9")
    a("s_add_u32 s55, s55, s51")
    def Rb(it): return ACC + 16*it
    for it in range(5):
        R = Rb(it)
        a(f"ds_read_b64 v[{R}:{R+1}], v{T+1} offset:{16*it}")
        a(f"ds_read_b64 v[{R+2}:{R+3}], v{T+1} offset:{16*it+72}")
        a(f"ds_read_b64 v[{R+4}:{R+5}], v{T+2} offset:{640*it+32}")
        a(f"ds_read_b64 v[{R+6}:{R+7}], v{T+2} offset:{640*it+192}")
        a(f"ds_read_b64 v[{R+12}:{R+13}], v{T+4} offset:{640*it+8}")
        a(f"ds_read_b64 v[{R+14}:{R+15}], v{T+4} offset:{640*it+168}")
        if it % 2 == 1: a("s_waitcnt lgkmcnt(0)")
    a("s_waitcnt lgkmcnt(0)")
    a("s_barrier")
    for it in range(5):
        R = Rb(it)
        a(f"ds_read_b128 v[{R+8}:{R+11}], v{T+3} offset:{32*it}")
    for it in range(5):
        R = Rb(it)
        if it == 4:
            a("s_cmp_eq_u32 s51, 1")
            a("s_cbranch_scc1 K1_fin_end")
        a(f"s_add_u32 s57, s55, {2*it}")
        a("s_lshr_b32 s58, s57, 3")
        a("s_lshl_b32 s58, s58, 11")
        a("s_add_u32 s58, s58, s56")
        a("s_and_b32 s59, s57, 3")
        a("s_lshl_b32 s59, s59, 8")
        a("s_add_u32 s58, s58, s59")
        a("s_bfe_u32 s59, s57, 0x10002")
        a("s_lshl_b32 s59, s59, 3")
        a("s_add_u32 s58, s58, s59")
        a(f"s_waitcnt lgkmcnt({4-it})")
        for e in range(2):
            gr, gi = R+e, R+2+e
            pr, pi = R+4+2*e, R+5+2*e
            fr, fi = R+8+2*e, R+9+2*e
            cr, ci = R+12+2*e, R+13+2*e
            a(f"v_fmac_f32 v{gr}, v{pr}, v{fr}")
            a(f"v_fmac_f32 v{gi}, v{pr}, v{fi}")
            a(f"v_fma_f32 v{gr}, -v{pi}, v{fi}, v{gr}")
            a(f"v_fmac_f32 v{gi}, v{pi}, v{fr}")
            a(f"v_mul_f32 v{pr}, v{cr}, v{gr}")
            a(f"v_mul_f32 v{pi}, v{cr}, v{gi}")
            a(f"v_fma_f32 v{pr}, -v{ci}, v{gi}, v{pr}")
            a(f"v_fmac_f32 v{pi}, v{ci}, v{gr}")
        a(f"v_cvt_pk_bf16_f32 v{R}, v{R+4}, v{R+5}")
        a(f"v_cvt_pk_bf16_f32 v{R+1}, v{R+6}, v{R+7}")
        a(f"buffer_store_dwordx2 v[{R}:{R+1}], v{T+5}, s[16:19], s58 offen {HS}")
    a.label("K1_fin_end")
    stamp(3)
    if split:
        if stamps:
            a("s_waitcnt vmcnt(0)")
            stamp(4)
            a("s_waitcnt lgkmcnt(0)")
            for n in range(1, 5):
                a(f"s_sub_u32 s{44+n}, s{82+2*n}, s82")
                a(f"v_mov_b32 v{16+n}, s{44+n}")
            a("v_mov_b32 v16, s82")
            a("s_lshl_b32 s36, s2, 3")
            a("s_add_u32 s36, s36, s20")
            a("s_lshl_b32 s36, s36, 6")
            a("s_add_u32 s36, s36, 0xF000000")
            a("v_mov_b32 v28, 0")
            a("buffer_store_dwordx4 v[16:19], v28, s[16:19], s36 offen")
            a("buffer_store_dword v20, v28, s[16:19], s36 offen offset:16")
            a("s_waitcnt vmcnt(0)")
        a.label("K1_done")
        a("s_endpgm")
        return a.text(), kernel_desc(name, NARCH+NACC, NARCH)
    a("s_waitcnt lgkmcnt(0)")
    if stamps:
        a("s_waitcnt lgkmcnt(0)")
        a("s_sub_u32 s49, s96, s82")
        a("s_sub_u32 s50, s98, s82")
        a("s_sub_u32 s51, s78, s82")
        a("s_sub_u32 s52, s84, s82")
        a(f"v_mov_b32 v{T}, s49")
        a(f"v_mov_b32 v{T+1}, s50")
        a(f"v_mov_b32 v{T+2}, s51")
        a(f"v_mov_b32 v{T+3}, s52")
        a("s_lshl_b32 s49, s2, 3")
        a("s_add_u32 s49, s49, s20")
        a("s_lshl_b32 s49, s49, 4")
        a("s_add_u32 s49, s49, 0xF100000")
        a(f"v_mov_b32 v{T+4}, 0")
        a(f"buffer_store_dwordx4 v[{T}:{T+3}], v{T+4}, s[16:19], s49 offen")
    a("s_barrier")
    a("s_cmp_lt_u32 s20, 4")
    a("s_cbranch_scc1 KM_p2")
    a("s_waitcnt vmcnt(0)")
    a("s_barrier")
    a("s_endpgm")
    a.label("KM_p2")
    a("s_mov_b32 s4, s10")
    a("s_mov_b32 s5, s11")
    a.vmq = []; a.lgq = []
    k2.setup(a)
    for st in range(4):
        for q in range(7): k2.dma(a, st, q)
    a("s_waitcnt vmcnt(28)")
    a("s_barrier")
    a("s_cmp_lg_u32 s20, 0")
    a("s_cbranch_scc1 KM_p2n")
    setflag(3, 88)
    a("s_mov_b32 exec_hi, 0")
    a("v_lshlrev_b32 v88, 8, v0")
    a("s_lshr_b32 s44, s22, 1")
    a("s_lshl_b32 s44, s44, 13")
    a(f"s_add_u32 s44, s44, {FLAG_OFF}")
    poll("KM_poll2", 88, "s44", 3, 89)
    a("s_mov_b64 exec, -1")
    a.label("KM_p2n")
    a("s_waitcnt vmcnt(0)")
    a("s_barrier")
    a.vmq = []
    stamp(4)
    nost = lambda n: None
    a("s_cmp_eq_u32 s25, 3")
    a("s_cbranch_scc1 K2_ssm")
    k2.body(a, 48, nost, hflag="", pre_dma_done=True)
    a("s_branch K2_tail")
    a.label("K2_ssm")
    a.vmq = []; a.lgq = []
    k2.body(a, 36, nost, hflag="", pre_dma_done=True)
    a.label("K2_tail")
    stamp(5)
    a("s_nop 7")
    k2.tail(a, nost, mega=(setflag, poll))
    if stamps:
        a("s_waitcnt vmcnt(0)")
        stamp(6)
        a("s_waitcnt lgkmcnt(0)")
        for n in range(1, 7):
            a(f"s_sub_u32 s{44+n}, s{82+2*n}, s82")
            a(f"v_mov_b32 v{16+n}, s{44+n}")
        a("v_mov_b32 v16, s82")
        a("s_lshl_b32 s36, s2, 2")
        a("s_add_u32 s36, s36, s20")
        a("s_lshl_b32 s36, s36, 5")
        a("s_add_u32 s36, s36, 0xF000000")
        a("v_mov_b32 v28, 0")
        a("buffer_store_dwordx4 v[16:19], v28, s[16:19], s36 offen")
        a("buffer_store_dwordx4 v[20:23], v28, s[16:19], s36 offen offset:16")
        a("s_waitcnt vmcnt(0)")
    a.label("K1_done")
    a("s_endpgm")
    return a.text(), kernel_desc(name, NARCH+NACC, NARCH)

if __name__ == "__main__":
    body, desc = gen_km(stamps=("stamps" in sys.argv))
    hdr_src = open("parallel_sum__ssm_conv_s5__swiglu_ffn__prompt.s.ref").read().split("\n")
    head = []
    for l in hdr_src:
        if "@launch" in l: continue
        if not l.startswith(";"): break
        head.append(l)
    head.append(f"; @launch grid=(256,1,1) block=(512,1,1) lds={KM_LDS}")
    out = "\n".join(head) + "\n.amdgcn_target \"amdgcn-amd-amdhsa--gfx950\"\n" + body + desc
    open(sys.argv[1], "w").write(out)
```

```python
from common import *
import sys
ACC = 16
TMP = 88
HPD = 8
HSL = HPD + 1
HR = 96
WPD = 6
WSL = 8
WR = 168
NARCH = 200
NACC = 32
NS = 5
STG = 27648
K2_LDS = NS*STG
def acc_reg(i, j): return ACC + (j*2+i)*4
def rng(t, b, n=4): return f"{t}[{b}:{b+n-1}]"

def setup(a):
    T = TMP
    a("v_lshlrev_b32 v1, 4, v0")
    a("s_and_b32 s23, s2, 7")
    a("s_lshr_b32 s24, s2, 3")
    a("s_and_b32 s25, s23, 3")
    a("s_lshr_b32 s23, s23, 2")
    a("s_lshl_b32 s23, s23, 3")
    a("s_lshr_b32 s22, s24, 2")
    a("s_add_u32 s22, s22, s23")
    a("s_and_b32 s21, s24, 3")
    a("s_mul_i32 s23, s20, 24")
    a("s_mul_i32 s24, s21, 288")
    a("s_movk_i32 s26, 3641")
    a("s_movk_i32 s27, 1152")
    for q in range(7):
        if q: a(f"v_add_u32 v{T}, {q*64}, v0")
        else: a(f"v_mov_b32 v{T}, v0")
        a(f"v_mul_lo_u32 v{T+1}, v{T}, s26")
        a(f"v_lshrrev_b32 v{T+1}, 16, v{T+1}")
        a(f"v_mul_u32_u24 v{T+2}, 18, v{T+1}")
        a(f"v_sub_u32 v{T+2}, v{T}, v{T+2}")
        a(f"v_add_u32 v{T+1}, s23, v{T+1}")
        a(f"v_mul_lo_u32 v{T+1}, v{T+1}, s27")
        a(f"v_lshl_add_u32 v{T+1}, v{T+2}, 4, v{T+1}")
        a(f"v_add_u32 v{2+q}, s24, v{T+1}")
    a("s_mul_i32 s27, s20, 6912")
    a("s_lshl_b32 s28, s22, 2")
    a("s_add_u32 s28, s28, s20")
    a("s_mul_i32 s28, s28, 180")
    a("s_mul_i32 s29, s25, 48")
    a("s_add_u32 s28, s28, s29")
    a("s_lshl_b32 s28, s28, 11")
    a(f"s_add_u32 s28, s28, {HF_OFF}")
    srd(a, 16, 8, WS_BYTES)
    a(f"s_add_u32 s36, s8, {CST_OFF}")
    a("s_addc_u32 s37, s9, 0")
    a("s_cmp_lt_u32 s25, 3")
    a("s_cselect_b32 s40, s4, s36")
    a("s_cselect_b32 s41, s5, s37")
    a(f"s_mov_b32 s38, {1152*576*2}")
    a(f"s_cselect_b32 s42, {4608*576*2}, s38")
    a("s_mov_b32 s43, 0x00020000")
    a(f"s_mul_i32 s29, s25, {48*32*1152}")
    a("s_cselect_b32 s29, s29, 0")
    a("s_and_b32 s41, s41, 0xffff")
    a(f"v_lshrrev_b32 v{T}, 2, v0")
    a(f"v_mul_u32_u24 v{T}, 288, v{T}")
    a(f"v_and_b32 v{T+1}, 3, v0")
    a(f"v_lshl_add_u32 v9, v{T+1}, 3, v{T}")
    for b in range(1, NS):
        a(f"v_add_u32 v{9+b}, {b*STG}, v9")

def dma(a, stage, q):
    b = stage % NS
    if q == 0: a(f"s_add_u32 s30, s29, {stage*96*1152}")
    a(f"s_add_u32 m0, s27, {b*STG + q*1024}")
    if q == 6: a("s_mov_b32 exec_hi, 0xffff")
    else: a("s_nop 0")
    a.vm(f"buffer_load_dwordx4 v{2+q}, s[40:43], s30 offen sc1 lds", f"D{stage}")
    if q == 6: a("s_mov_b32 exec_hi, -1")

def body(a, nks, stamp, hflag="", pre_dma_done=False):
    nstg = nks//3
    def hload(ks, i):
        slot = ks % HSL
        if i == 0: a(f"s_add_u32 s33, s28, {ks*2048}")
        a.vm(f"buffer_load_dwordx4 {rng('v', HR + slot*8 + i*4)}, v1, s[16:19], s33 offen offset:{i*1024} {hflag}", f"H{ks}")
    def wread(sig, half):
        ks, j = divmod(sig, 9)
        stage, sub = divmod(ks, 3)
        b = stage % NS
        off = sub*9216 + half*4608 + j*32
        dst = WR + (sig % WSL)*4 + half*2
        a.lg(f"ds_read_b64_tr_b16 {rng('v', dst, 2)}, v{9+b} offset:{off}", f"W{sig}")
    if not pre_dma_done:
        for q in range(7): dma(a, 0, q)
    for ks in range(2):
        for i in range(2): hload(ks, i)
    pend = []
    if not pre_dma_done:
        pend = [(1, q) for q in range(7)] + [(2, q) for q in range(7)] + [(3, q) for q in range(7)]
        for _ in range(7):
            st, q = pend.pop(0); dma(a, st, q)
    for ks in range(2, HPD):
        for i in range(2): hload(ks, i)
    a.wait(vm="D0")
    a("s_barrier")
    stamp(1)
    NJ = nks*9
    for sig in range(WPD):
        for h in range(2): wread(sig, h)
    for sig in range(NJ):
        ks, j = divmod(sig, 9)
        fill = []
        if (sig+WPD) % 27 == 0 and sig+WPD < NJ:
            s1 = (sig+WPD)//27
            assert not any(st <= s1 for st, q in pend)
            a.wait(vm=f"D{s1}")
            a("s_barrier")
            if s1+3 < nstg:
                pend += [(s1+3, q) for q in range(7)]
        if sig+WPD < NJ:
            for h in range(2):
                fill.append(lambda h=h: wread(sig+WPD, h))
        if j == 0 and ks+HPD < nks:
            for i in range(2):
                fill.append(lambda i=i: hload(ks+HPD, i))
        elif pend and (j % 2 == 1 or len(pend) > 7):
            st, q = pend.pop(0)
            fill.append(lambda st=st, q=q: dma(a, st, q))
        if j == 0:
            a.wait(vm=f"H{ks}", lg=f"W{sig}")
        else:
            a.wait(lg=f"W{sig}")
        slot = ks % HSL
        for i in range(2):
            r = acc_reg(i, j)
            wsrc = rng('v', WR + (sig % WSL)*4)
            hsrc = rng('v', HR + slot*8 + i*4)
            c = "0" if ks == 0 else rng('v', r)
            a(f"v_mfma_f32_16x16x32_bf16 {rng('v', r)}, {wsrc}, {hsrc}, {c}")
            if fill: fill.pop(0)()
        while fill: fill.pop(0)()

def tail_pre(a):
    a("s_load_dwordx2 s[46:47], s[0:1], 0")
    a("s_load_dwordx2 s[6:7], s[0:1], 64")
    a("v_and_b32 v90, 15, v0")
    a("v_lshrrev_b32 v91, 4, v0")
    a("v_mul_u32_u24 v92, 1152, v90")
    a("v_lshl_add_u32 v92, v91, 3, v92")
    a("v_lshrrev_b32 v93, 1, v91")
    a("v_lshlrev_b32 v93, 8, v93")
    a("v_lshl_add_u32 v93, v90, 4, v93")
    a("v_and_b32 v94, 1, v91")
    a("v_lshl_add_u32 v93, v94, 3, v93")
    a("v_lshlrev_b32 v94, 3, v91")
    a("s_waitcnt lgkmcnt(0)")
    srd(a, 12, 46, 2048*576*2)
    srd(a, 36, 6, 576*2)
    for it in range(5):
        a(f"s_add_u32 s44, s20, {4*it}")
        a("s_min_u32 s44, s44, 17")
        a("s_cmp_ge_u32 s44, 9")
        a("s_cselect_b32 s45, 1, 0")
        a("s_mul_i32 s46, s45, 9")
        a("s_sub_u32 s46, s44, s46")
        a("s_lshl_b32 s47, s22, 3")
        a("s_lshl_b32 s48, s25, 1")
        a("s_add_u32 s47, s47, s48")
        a("s_add_u32 s47, s47, s45")
        a("s_mul_i32 s48, s21, 9")
        a("s_add_u32 s48, s48, s46")
        a("s_mul_i32 s49, s47, 18432")
        a("s_lshl_b32 s50, s48, 5")
        a("s_add_u32 s49, s49, s50")
        a(f"s_mov_b32 s{52+it}, s49")
        a.vm(f"buffer_load_dwordx2 a[{6*it}:{6*it+1}], v92, s[12:15], s49 offen", "TP")
        a("s_lshr_b32 s51, s47, 1")
        a("s_mul_i32 s51, s51, 18")
        a("s_lshr_b32 s49, s48, 1")
        a("s_add_u32 s51, s51, s49")
        a("s_lshl_b32 s51, s51, 11")
        a("s_and_b32 s49, s47, 1")
        a("s_lshl_b32 s49, s49, 10")
        a("s_add_u32 s51, s51, s49")
        a("s_and_b32 s49, s48, 1")
        a("s_lshl_b32 s49, s49, 9")
        a("s_add_u32 s51, s51, s49")
        if XNF_OFF: a(f"s_add_u32 s51, s51, {XNF_OFF}")
        a.vm(f"buffer_load_dwordx2 a[{6*it+2}:{6*it+3}], v93, s[16:19], s51 offen sc1", "TP")
        a.vm(f"buffer_load_dwordx2 a[{6*it+4}:{6*it+5}], v94, s[36:39], s50 offen", "TP")

def tail(a, stamp, mega=False):
    a("s_load_dwordx2 s[10:11], s[0:1], 104")
    a("s_lshl_b32 s26, s22, 2")
    a("s_add_u32 s26, s26, s21")
    a("s_lshl_b32 s27, s26, 2")
    a("s_add_u32 s28, s27, s25")
    a("s_lshl_b32 s28, s28, 2")
    a("s_add_u32 s28, s28, s20")
    a(f"s_mul_i32 s28, s28, {18*1024}")
    a(f"s_add_u32 s28, s28, {PART_OFF}")
    a("v_and_b32 v2, 15, v0")
    a("v_lshrrev_b32 v3, 4, v0")
    a("v_mul_u32_u24 v4, 1152, v2")
    a("v_lshl_add_u32 v4, v3, 3, v4")
    a("v_lshlrev_b32 v5, 1, v4")
    a("s_barrier")
    stamp(5)
    a("s_cmp_eq_u32 s20, s25")
    a("s_cbranch_scc1 K2_own")
    for f in range(18):
        i, j = divmod(f, 9)
        if f % 4 == 0: a(f"s_add_u32 s35, s28, {f*1024}")
        a(f"buffer_store_dwordx4 {rng('v', acc_reg(i, j))}, v1, s[16:19], s35 offen offset:{(f%4)*1024} sc1")
    a("s_branch K2_pub")
    a.label("K2_own")
    for f in range(18):
        i, j = divmod(f, 9)
        a(f"ds_write_b128 v1, {rng('v', acc_reg(i, j))} offset:{f*1024}")
    a.label("K2_pub")
    a("s_waitcnt vmcnt(0) lgkmcnt(0)")
    srd(a, 40, 10, 2048*576*4)
    stamp(6)
    a("s_barrier")
    if not mega:
        a("s_lshl_b32 s29, s27, 2")
        a(f"s_add_u32 s29, s29, {FLAG2_OFF}")
        a("v_lshlrev_b32 v88, 2, v0")
        a("s_cmp_lg_u32 s20, 0")
        a("s_cbranch_scc1 K2_noflag")
        a("s_mov_b64 exec, 1")
        a("v_mov_b32 v89, 1")
        a("s_lshl_b32 s44, s25, 2")
        a("s_add_u32 s44, s44, s29")
        a("buffer_store_dword v89, v88, s[16:19], s44 offen sc1")
        a.label("K2_noflag")
        a("s_mov_b64 exec, 15")
        a.label("K2_poll")
        a("buffer_load_dword v89, v88, s[16:19], s29 offen sc1")
        a("s_waitcnt vmcnt(0)")
        a("v_cmp_eq_u32 vcc, 0, v89")
        a("s_nop 4")
        a("s_cbranch_vccz K2_polled")
        a("s_sleep 1")
        a("s_branch K2_poll")
    else:
        setflag, poll = mega
        a("s_cmp_lg_u32 s20, 0")
        a("s_cbranch_scc1 K2_noflag")
        setflag(5, 88)
        a.label("K2_noflag")
        a("s_mov_b64 exec, 15")
        a("v_lshlrev_b32 v88, 8, v0")
        a("s_andn2_b32 s29, s2, 3")
        a("s_lshl_b32 s29, s29, 8")
        a(f"s_add_u32 s29, s29, {FLAG_OFF}")
        poll("K2_poll", 88, "s29", 5, 89)
    a.label("K2_polled")
    a("s_mov_b64 exec, -1")
    stamp(3)
    P0 = 96
    a("s_lshl_b32 s44, s20, 10")
    a("v_add_u32 v88, s44, v1")
    for src in range(4):
        lo, le = a.newlabel("K2_so"), a.newlabel("K2_se")
        a(f"s_cmp_eq_u32 s25, {src}")
        a(f"s_cbranch_scc1 {lo}")
        a(f"s_add_u32 s44, s27, {src}")
        a("s_lshl_b32 s44, s44, 2")
        a("s_add_u32 s44, s44, s25")
        a("s_mul_i32 s44, s44, 18")
        a("s_add_u32 s44, s44, s20")
        a("s_lshl_b32 s44, s44, 10")
        a(f"s_add_u32 s44, s44, {PART_OFF}")
        for it in range(5):
            if it == 4:
                a("s_cmp_gt_u32 s20, 1")
                a(f"s_cbranch_scc1 {le}")
            d = P0 + it*16 + src*4
            a(f"buffer_load_dwordx4 v[{d}:{d+3}], v1, s[16:19], s44 offen sc1")
            a("s_add_u32 s44, s44, 4096")
        a(f"s_branch {le}")
        a.label(lo)
        for it in range(5):
            d = P0 + it*16 + src*4
            a(f"ds_read_b128 v[{d}:{d+3}], v88 offset:{4096*it}")
        a.label(le)
    a("s_waitcnt vmcnt(0) lgkmcnt(0)")
    stamp(8)
    for it in range(5):
        if it == 4:
            a("s_cmp_gt_u32 s20, 1")
            a("s_cbranch_scc1 K2_l3")
        P = P0 + it*16
        X = 16 + it*12
        for r in range(6): a(f"v_accvgpr_read_b32 v{88+r}, a{6*it+r}")
        for r in range(4): a(f"v_add_f32 v{P+r}, v{P+r}, v{P+4+r}")
        for (src, dst) in ((88, X), (90, X+4), (92, X+8)):
            a(f"v_lshlrev_b32 v{dst}, 16, v{src}")
            a(f"v_and_b32 v{dst+1}, 0xffff0000, v{src}")
            a(f"v_lshlrev_b32 v{dst+2}, 16, v{src+1}")
            a(f"v_and_b32 v{dst+3}, 0xffff0000, v{src+1}")
        for r in range(4): a(f"v_add_f32 v{P+r}, v{P+r}, v{P+8+r}")
        for r in range(4): a(f"v_mul_f32 v{X+4+r}, v{X+4+r}, v{X+8+r}")
        for r in range(4): a(f"v_cvt_pk_bf16_f32 v{P+r}, 0, v{P+r}")
        for r in range(4): a(f"v_cvt_pk_bf16_f32 v{X+4+r}, 0, v{X+4+r}")
        for r in range(4): a(f"v_add_f32 v{P+12+r}, v{P+12+r}, v{X+4+r}")
        for r in range(4): a(f"v_add_f32 v{P+12+r}, v{X+r}, v{P+12+r}")
        for r in range(4): a(f"v_add_f32 v{P+12+r}, v{P+12+r}, v{P+r}")
        a(f"s_lshl_b32 s44, s{52+it}, 1")
        a(f"buffer_store_dwordx4 v[{P+12}:{P+15}], v5, s[40:43], s44 offen")
    a.label("K2_l3")

def stamps_out(a):
    a("s_waitcnt vmcnt(0)")
    a("s_memrealtime s[78:79]")
    a("s_waitcnt lgkmcnt(0)")
    for n in range(1, 9):
        a(f"s_sub_u32 s{44+n}, s{70+2*n}, s70")
        a(f"v_mov_b32 v{16+n}, s{44+n}")
    a("v_mov_b32 v16, s70")
    a("s_lshl_b32 s36, s2, 2")
    a("s_add_u32 s36, s36, s20")
    a("s_lshl_b32 s36, s36, 6")
    a("s_add_u32 s36, s36, 0xF100000")
    a("v_mov_b32 v28, 0")
    a("buffer_store_dwordx4 v[16:19], v28, s[16:19], s36 offen")
    a("buffer_store_dwordx4 v[20:23], v28, s[16:19], s36 offen offset:16")
    a("buffer_store_dword v24, v28, s[16:19], s36 offen offset:32")
    a("s_waitcnt vmcnt(0)")

def gen_k2(name="k2_kernel", stamps=False):
    a = Asm()
    def stamp(n):
        if stamps: a(f"s_memrealtime s[{70+2*n}:{71+2*n}]")
    a.raw(kernel_header(name))
    a("s_cmp_ge_u32 s2, 256")
    a("s_cbranch_scc1 K2_done")
    stamp(0)
    a("s_load_dwordx2 s[4:5], s[0:1], 96")
    a("s_load_dwordx2 s[8:9], s[0:1], 120")
    a("v_lshrrev_b32 v15, 6, v0")
    a("v_and_b32 v0, 63, v0")
    a("v_readfirstlane_b32 s20, v15")
    a("s_waitcnt lgkmcnt(0)")
    setup(a)
    tail_pre(a)
    saved = list(a.vmq)
    a("s_cmp_eq_u32 s25, 3")
    a("s_cbranch_scc1 K2_ssm")
    body(a, 48, stamp)
    a("s_branch K2_tail")
    a.label("K2_ssm")
    a.vmq = list(saved); a.lgq = []
    body(a, 36, stamp)
    a.label("K2_tail")
    stamp(2)
    a("s_nop 7")
    tail(a, stamp)
    if stamps: stamps_out(a)
    a.label("K2_done")
    a("s_endpgm")
    return a.text(), kernel_desc(name, NARCH+NACC, NARCH)
```

```python
from common import *
import sys
import k2
ACC = 16
SAC = 160
TMP = 184
NARCH = 200
XR = 0
FR = 24
NRING = 8
NACC = 56
NS = 3
SSTG = 4608
WBASE = NS*SSTG
STG = 36864
PD = 5
K1_LDS = WBASE + NS*STG
SL_OFF = 16384
SL_STR = 208
EG_OFF = SL_OFF + 256*SL_STR
PTL_OFF = K1_LDS
KM_LDS = k2.K2_LDS
LOG2E = 0x3fb8aa3b
INV2PI = 0x3e22f983
def acc_reg(i, j, m): return ACC + ((j*2 + i)*2 + m)*4
def sacc_reg(i, u): return SAC + (u*2 + i)*4
def rng(t, b, n=4): return f"{t}[{b}:{b+n-1}]"

def gen_km(name="parallel_sum__ssm_conv_s5__swiglu_ffn__prompt_kernel", stamps=False, pf_wd=True, split=False, wbl2=False):
    HS = "" if (split or wbl2) else "sc1"
    a = Asm()
    def stamp(n):
        if stamps:
            a(f"s_memrealtime s[{82+2*n}:{83+2*n}]")
    T = TMP
    a.raw(kernel_header(name))
    a("s_cmp_ge_u32 s2, 256")
    a("s_cbranch_scc1 K1_done")
    stamp(0)
    a("s_load_dwordx4 s[4:7], s[0:1], 80")
    a("s_load_dwordx2 s[8:9], s[0:1], 120")
    a("s_load_dwordx4 s[36:39], s[0:1], 24")
    a("s_load_dwordx2 s[10:11], s[0:1], 96")
    a("s_load_dwordx4 s[68:71], s[0:1], 0")
    a("s_load_dwordx2 s[72:73], s[0:1], 16")
    a("s_load_dwordx2 s[74:75], s[0:1], 56")
    a("s_load_dwordx4 s[76:79], s[0:1], 40")
    a("s_load_dwordx2 s[80:81], s[0:1], 112")
    a("v_lshrrev_b32 v15, 6, v0")
    a("v_and_b32 v0, 63, v0")
    a("v_readfirstlane_b32 s20, v15")
    a("v_lshlrev_b32 v1, 4, v0")
    a("s_and_b32 s21, s2, 7")
    a("s_lshr_b32 s22, s2, 3")
    a("s_and_b32 s23, s22, 3")
    a("s_lshl_b32 s21, s21, 2")
    a("s_add_u32 s21, s21, s23")
    a("s_lshr_b32 s22, s22, 2")
    a("s_waitcnt lgkmcnt(0)")
    a("s_cmp_gt_u32 s20, 1")
    a("s_cbranch_scc1 KM_noxl")
    srd(a, 48, 68, 2048*576*2)
    a("v_lshrrev_b32 v48, 4, v0")
    a("v_and_b32 v49, 15, v0")
    a("v_mul_u32_u24 v50, 1152, v48")
    a("v_lshl_add_u32 v50, v49, 3, v50")
    a("s_lshl_b32 s52, s22, 8")
    a("s_lshl_b32 s53, s21, 3")
    a("s_add_u32 s52, s52, s53")
    a("s_lshl_b32 s53, s20, 2")
    a("s_add_u32 s52, s52, s53")
    a("s_mul_i32 s53, s52, 1152")
    for i in range(9):
        a(f"buffer_load_dwordx2 v[{16+2*i}:{17+2*i}], v50, s[48:51], s53 offen offset:{i*128}")
    a.label("KM_noxl")
    a("s_and_b32 s23, s20, 3")
    a("s_lshl_b32 s23, s23, 4")
    a("s_mul_i32 s24, s21, 288")
    a("s_movk_i32 s25, 3641")
    a("s_movk_i32 s26, 9216")
    a("s_mul_i32 s27, s20, 4608")
    a(f"s_add_u32 s27, s27, {WBASE}")
    a("s_mul_i32 s29, s20, 576")
    a("s_lshl_b32 s28, s22, 3")
    a("s_add_u32 s28, s28, s20")
    a(f"s_mul_i32 s28, s28, {18*2048}")
    if XNF_OFF: a(f"s_add_u32 s28, s28, {XNF_OFF}")
    for q in range(5):
        d = 2+q
        if q: a(f"v_add_u32 v{T}, {q*64}, v0")
        else: a(f"v_mov_b32 v{T}, v0")
        a(f"v_mul_lo_u32 v{T+1}, v{T}, s25")
        a(f"v_lshrrev_b32 v{T+1}, 16, v{T+1}")
        a(f"v_mul_u32_u24 v{T+2}, 18, v{T+1}")
        a(f"v_sub_u32 v{T+2}, v{T}, v{T+2}")
        a(f"v_add_u32 v{T+1}, s23, v{T+1}")
        a(f"v_and_b32 v{T+3}, 0x23, v{T+1}")
        a(f"v_bfe_u32 v{T+4}, v{T+1}, 2, 2")
        a(f"v_lshl_add_u32 v{T+3}, v{T+4}, 3, v{T+3}")
        a(f"v_bfe_u32 v{T+4}, v{T+1}, 4, 1")
        a(f"v_lshl_add_u32 v{T+3}, v{T+4}, 2, v{T+3}")
        a(f"v_mul_lo_u32 v{T+3}, v{T+3}, s26")
        a(f"v_lshl_add_u32 v{T+3}, v{T+2}, 4, v{T+3}")
        a(f"v_add_u32 v{d}, s24, v{T+3}")
    a("s_mul_i32 s23, s20, 36")
    a(f"v_add_u32 v{T}, s23, v0")
    a(f"v_lshrrev_b32 v{T+1}, 3, v{T}")
    a(f"v_xor_b32 v{T+2}, v{T}, v{T+1}")
    a(f"v_and_b32 v{T+2}, 7, v{T+2}")
    a("s_mul_i32 s23, s21, 18")
    a("s_cmp_lt_u32 s20, 4")
    a("s_cselect_b32 s24, 0, 18")
    a("s_sub_u32 s23, s23, s24")
    a(f"v_add_u32 v{T+1}, s23, v{T+1}")
    a(f"v_mul_u32_u24 v{T+1}, 1152, v{T+1}")
    a(f"v_lshl_add_u32 v7, v{T+2}, 4, v{T+1}")
    a("s_waitcnt lgkmcnt(0)")
    a("s_cmp_lt_u32 s20, 4")
    a("s_cselect_b32 s12, s4, s6")
    a("s_cselect_b32 s13, s5, s7")
    a("s_cselect_b32 s40, s36, s38")
    a("s_cselect_b32 s41, s37, s39")
    a("s_and_b32 s13, s13, 0xffff")
    a(f"s_mov_b32 s14, {576*4608*2}")
    a("s_mov_b32 s15, 0x00020000")
    a("s_and_b32 s41, s41, 0xffff")
    a(f"s_mov_b32 s42, {576*576*2}")
    a("s_mov_b32 s43, 0x00020000")
    srd(a, 16, 8, WS_BYTES)
    srd(a, 44, 10, 4608*576*2)
    srd(a, 64, 80, 256)
    a("s_lshl_b32 s101, s2, 8")
    a(f"s_add_u32 s101, s101, {FLAG_OFF}")
    def setflag(val, t0=T+10):
        a("s_mov_b64 exec, 1")
        a(f"s_add_u32 s100, s3, {val}")
        a(f"v_mov_b32 v{t0}, s100")
        a(f"v_mov_b32 v{t0+1}, 0")
        a(f"buffer_store_dword v{t0}, v{t0+1}, s[16:19], s101 offen sc1")
        a("s_mov_b64 exec, -1")
    def poll(lbl, vaddr, soff, stage, t0):
        a.label(lbl)
        a(f"buffer_load_dword v{t0}, v{vaddr}, s[16:19], {soff} offen sc1")
        a(f"s_add_u32 s100, s3, {stage}")
        a("s_waitcnt vmcnt(0)")
        a(f"v_subrev_u32 v{t0}, s100, v{t0}")
        a(f"v_cmp_le_u32 vcc, {8-stage}, v{t0}")
        a("s_nop 4")
        a(f"s_cbranch_vccz {lbl}_ok")
        a("s_sleep 2")
        a(f"s_branch {lbl}")
        a.label(lbl + "_ok")

    def dma(stage, q):
        b = stage % NS
        if q < 5:
            a(f"s_add_u32 m0, s27, {b*STG + q*1024}")
            a(f"s_mov_b32 s30, {stage*64*9216}")
            if q == 4: a("s_mov_b32 exec_hi, 0")
            a.vm(f"buffer_load_dwordx4 v{2+q}, s[12:15], s30 offen lds", f"D{stage}")
            if q == 4: a("s_mov_b32 exec_hi, -1")
        else:
            a(f"s_add_u32 m0, s29, {b*SSTG}")
            a(f"s_movk_i32 s30, {stage*128}")
            a("s_mov_b32 exec_hi, 0xf")
            a.vm(f"buffer_load_dwordx4 v7, s[40:43], s30 offen lds", f"D{stage}")
            a("s_mov_b32 exec_hi, -1")
    def xload(ks, i):
        slot = ks % 3
        if i == 0:
            a(f"s_add_u32 s31, s28, {ks*2048}")
        a.vm(f"buffer_load_dwordx4 {rng('a', XR + slot*8 + i*4)}, v1, s[16:19], s31 offen offset:{i*1024} sc1", f"X{ks}")
    NF = 21
    def fread(f):
        ks, n = divmod(f, NF)
        stage, sub = divmod(ks, 2)
        b = stage % NS
        dst = FR + (f % NRING)*4
        if n < 18:
            j, m = divmod(n, 2)
            off = m*18432 + sub*9216 + j*32
            a.lg(f"ds_read_b64_tr_b16 {rng('a', dst, 2)}, v{11+b} offset:{off}", f"F{f}")
            a.lg(f"ds_read_b64_tr_b16 {rng('a', dst+2, 2)}, v{11+b} offset:{off+4608}", f"F{f}")
        else:
            u = n - 18
            areg = (8 + sub) if u < 2 else (T+12+sub)
            a.lg(f"ds_read_b128 {rng('a', dst)}, v{areg} offset:{b*SSTG + (2048 if u == 1 else 0)}", f"F{f}")

    def cst():
        a("s_sub_u32 s52, s20, 2")
        a("s_lshl_b32 s52, s52, 6")
        a("v_add_u32 v40, s52, v0")
        a(f"s_mov_b32 s57, {CST_OFF}")
        a("s_mov_b32 s58, 7456541")
        a("s_mul_i32 s59, s2, 324")
        for rnd in range(2):
            B = 16 + rnd*12
            a(f"v_add_u32 v41, {rnd*192}, v40")
            a("v_min_u32 v41, 323, v41")
            a("v_add_u32 v41, s59, v41")
            a("v_mul_hi_u32 v42, v41, s58")
            a("v_mul_u32_u24 v43, 576, v42")
            a("v_sub_u32 v43, v41, v43")
            a("v_cmp_le_u32 vcc, 72, v42")
            a("v_subrev_u32 v44, 72, v42")
            a("v_mov_b32 v46, s76")
            a("v_mov_b32 v47, s77")
            a("v_mov_b32 v48, s78")
            a("v_mov_b32 v49, s79")
            a("v_cndmask_b32 v44, v42, v44, vcc")
            a("v_cndmask_b32 v46, v46, v48, vcc")
            a("v_cndmask_b32 v47, v47, v49, vcc")
            a(f"v_mov_b32 v{B+9}, 0x80008000")
            a(f"v_cndmask_b32 v{B+9}, 0, v{B+9}, vcc")
            a("v_mul_u32_u24 v45, 9216, v44")
            a("v_lshl_add_u32 v45, v43, 1, v45")
            a("v_lshlrev_b32 v50, 1, v43")
            a("v_add_u32 v51, 1, v50")
            a("v_cndmask_b32 v50, v50, v51, vcc")
            a("v_and_b32 v51, 0xffffffe3, v50")
            a("v_bfe_u32 v60, v50, 2, 1")
            a("v_lshl_add_u32 v51, v60, 4, v51")
            a("v_bfe_u32 v60, v50, 3, 2")
            a("v_lshl_add_u32 v50, v60, 2, v51")
            a("v_mul_u32_u24 v50, 1152, v50")
            a(f"v_lshl_add_u32 v{B+8}, v44, 4, v50")
            a("v_add_co_u32 v46, vcc, v46, v45")
            a("s_nop 1")
            a("v_addc_co_u32 v47, vcc, 0, v47, vcc")
            a("v_add_co_u32 v48, vcc, 4608, v46")
            a("s_nop 1")
            a("v_addc_co_u32 v49, vcc, 0, v47, vcc")
            for e in range(8):
                base = "v[46:47]" if e < 4 else "v[48:49]"
                a(f"global_load_ushort v{B+e}, {base}, off offset:{(e%4)*1152}")
        a("s_waitcnt vmcnt(0)")
        for rnd in range(2):
            B = 16 + rnd*12
            for r in range(4):
                a(f"v_lshl_or_b32 v{52+4*rnd+r}, v{B+1+2*r}, 16, v{B+2*r}")
                a(f"v_xor_b32 v{52+4*rnd+r}, v{B+9}, v{52+4*rnd+r}")
            a(f"buffer_store_dwordx4 v[{52+4*rnd}:{55+4*rnd}], v{B+8}, s[16:19], s57 offen sc1")
    def phase0():
        a("s_cmp_gt_u32 s20, 1")
        a("s_cbranch_scc1 KM_r1")
        a("s_lshl_b32 s52, s22, 8")
        a("s_lshl_b32 s53, s21, 3")
        a("s_add_u32 s52, s52, s53")
        a("s_lshl_b32 s53, s20, 2")
        a("s_add_u32 s52, s52, s53")
        a("v_add_u32 v36, s52, v48")
        a("v_lshrrev_b32 v37, 5, v36")
        a(f"v_mul_u32_u24 v37, {18*2048}, v37")
        a("v_bfe_u32 v38, v36, 4, 1")
        a("v_lshl_add_u32 v37, v38, 10, v37")
        a("v_and_b32 v38, 15, v36")
        a("v_lshl_add_u32 v37, v38, 4, v37")
        a("v_lshrrev_b32 v38, 3, v49")
        a("v_lshl_add_u32 v37, v38, 11, v37")
        a("v_bfe_u32 v38, v49, 1, 2")
        a("v_lshl_add_u32 v37, v38, 8, v37")
        a("v_and_b32 v38, 1, v49")
        a("v_lshl_add_u32 v37, v38, 3, v37")
        a("v_mov_b32 v38, 0x3f803f80")
        a("v_mov_b32 v34, 0")
        a("v_mov_b32 v35, 0")
        a("s_waitcnt vmcnt(0)")
        for i in range(18):
            d = 34 + (i & 1)
            a(f"v_dot2_f32_bf16 v{d}, v{16+i}, v38, v{d}")
        a("s_nop 2")
        a("v_add_f32 v34, v34, v35")
        def red(v):
            for sh in (8, 4, 2, 1):
                a("s_nop 1")
                a(f"v_add_f32_dpp v{v}, v{v}, v{v} row_ror:{sh} row_mask:0xf bank_mask:0xf")
        red(34)
        a("v_mul_f32 v34, 0x3ae38e39, v34")
        a("v_mov_b32 v35, 0")
        a("v_mov_b32 v36, 0")
        for i in range(18):
            t = 40 + 2*(i & 3)
            a(f"v_lshlrev_b32 v{t}, 16, v{16+i}")
            a(f"v_and_b32 v{t+1}, 0xffff0000, v{16+i}")
            a(f"v_sub_f32 v{t}, v{t}, v34")
            a(f"v_sub_f32 v{t+1}, v{t+1}, v34")
            a(f"v_fmac_f32 v35, v{t}, v{t}")
            a(f"v_fmac_f32 v36, v{t+1}, v{t+1}")
        a("v_add_f32 v35, v35, v36")
        red(35)
        a("v_mul_f32 v35, 0x3ae38e39, v35")
        a("v_cvt_pk_bf16_f32 v34, 0, v34")
        a("v_cvt_pk_bf16_f32 v35, 0, v35")
        a("v_add_f32 v35, 0x3727c5ac, v35")
        a("v_cvt_pk_bf16_f32 v35, 0, v35")
        a("v_sqrt_f32 v35, v35")
        a("s_nop 0")
        a("v_cvt_pk_bf16_f32 v35, 0, v35")
        a("v_rcp_f32 v35, v35")
        a("s_nop 0")
        for i in range(18):
            t = 40 + 2*(i & 3)
            a(f"v_lshlrev_b32 v{t}, 16, v{16+i}")
            a(f"v_and_b32 v{t+1}, 0xffff0000, v{16+i}")
            a(f"v_sub_f32 v{t}, v{t}, v34")
            a(f"v_sub_f32 v{t+1}, v{t+1}, v34")
            a(f"v_cvt_pk_bf16_f32 v{t}, 0, v{t}")
            a(f"v_cvt_pk_bf16_f32 v{t+1}, 0, v{t+1}")
            a(f"v_mul_f32 v{t}, v{t}, v35")
            a(f"v_mul_f32 v{t+1}, v{t+1}, v35")
            a(f"v_cvt_pk_bf16_f32 v{16+i}, v{t}, v{t+1}")
            if i & 1:
                a(f"s_mov_b32 s53, {XNF_OFF + (i//2)*4096}")
                a(f"buffer_store_dwordx2 v[{16+i-1}:{16+i}], v37, s[16:19], s53 offen sc1")
        a("s_waitcnt vmcnt(0)")
        a("s_branch KM_r_end")
        a.label("KM_r1")
        a("s_cmp_gt_u32 s20, 4")
        a("s_cbranch_scc1 KM_r2")
        cst()
        a("s_branch KM_r_end")
        a.label("KM_r2")
        a("s_cmp_lg_u32 s20, 6")
        a("s_cbranch_scc1 KM_r3")
        a("s_memrealtime s[52:53]")
        a("s_waitcnt lgkmcnt(0)")
        a("s_lshl_b32 s52, s52, 3")
        a("s_or_b32 s52, s52, 8")
        a("s_mov_b64 exec, 1")
        a("v_mov_b32 v16, s52")
        a("v_mov_b32 v17, 0")
        a("v_mov_b32 v18, 0")
        a("v_mov_b32 v19, s52")
        a("buffer_atomic_cmpswap v[16:17], v18, s[64:67], 0 offen sc0")
        a("s_waitcnt vmcnt(0)")
        a("v_cmp_eq_u32 vcc, 0, v16")
        a("s_nop 1")
        a("v_cndmask_b32 v16, v16, v19, vcc")
        a(f"v_mov_b32 v18, {PTL_OFF + 2880}")
        a("ds_write_b32 v18, v16")
        a("s_mov_b64 exec, -1")
        a("s_branch KM_r_end")
        a.label("KM_r3")
        a("s_cmp_lg_u32 s20, 5")
        a("s_cbranch_scc1 KM_r_end")
        a("s_mul_i32 s52, s21, 18")
        a("v_min_u32 v16, 17, v0")
        a("v_add_u32 v17, s52, v16")
        a("v_lshlrev_b32 v17, 1, v17")
        a("global_load_ushort v18, v17, s[70:71]")
        a("global_load_ushort v19, v17, s[72:73]")
        a("global_load_ushort v20, v17, s[74:75]")
        a("s_waitcnt vmcnt(0)")
        a("v_lshlrev_b32 v18, 16, v18")
        a("v_lshlrev_b32 v19, 16, v19")
        a("v_lshlrev_b32 v20, 16, v20")
        a(f"v_mul_f32 v20, {LOG2E}, v20")
        a("v_exp_f32 v20, v20")
        a("s_nop 0")
        a("v_cvt_pk_bf16_f32 v20, 0, v20")
        a("v_mul_f32 v21, v20, v18")
        a("v_mul_f32 v22, v20, v19")
        a(f"v_mul_f32 v21, {LOG2E}, v21")
        a(f"v_mul_f32 v22, {INV2PI}, v22")
        a("v_exp_f32 v21, v21")
        a("v_fract_f32 v22, v22")
        a("s_nop 0")
        a("v_cos_f32 v23, v22")
        a("v_sin_f32 v24, v22")
        a("s_nop 0")
        a("v_mul_f32 v64, v21, v23")
        a("v_mul_f32 v65, v21, v24")
        a("v_add_f32 v25, -1.0, v64")
        a("v_mul_f32 v26, v18, v18")
        a("v_fmac_f32 v26, v19, v19")
        a("v_rcp_f32 v27, v26")
        a("v_mul_f32 v66, v25, v18")
        a("v_fmac_f32 v66, v65, v19")
        a("v_mul_f32 v67, v65, v18")
        a("v_fma_f32 v67, -v25, v19, v67")
        a("v_fma_f32 v28, -v26, v27, 1.0")
        a("v_fmac_f32 v27, v28, v27")
        a("v_add_f32 v27, v27, v27")
        a("v_mul_f32 v66, v66, v27")
        a("v_mul_f32 v67, v67, v27")
        a("v_mov_b32 v72, v64")
        a("v_mov_b32 v73, v65")
        def cmul(d, x, y):
            a(f"v_mul_f32 v{d}, v{x}, v{y}")
            a(f"v_mul_f32 v{d+1}, v{x}, v{y+1}")
            a(f"v_fma_f32 v{d}, -v{x+1}, v{y+1}, v{d}")
            a(f"v_fmac_f32 v{d+1}, v{x+1}, v{y}")
        for j in range(1, 16):
            cmul(72+2*j, 64, 70+2*j)
        a("v_mov_b32 v68, v102")
        a("v_mov_b32 v69, v103")
        cmul(30, 68, 68); cmul(32, 30, 30); cmul(30, 32, 32); cmul(70, 30, 30)
        a("v_mul_u32_u24 v17, 160, v16")
        a(f"v_add_u32 v17, {PTL_OFF}, v17")
        a("v_cmp_gt_u32 vcc, 18, v0")
        a("s_and_saveexec_b64 s[60:61], vcc")
        for q in range(10):
            a(f"ds_write_b128 v17, v[{64+4*q}:{67+4*q}] offset:{q*16}")
        a("s_mov_b64 exec, s[60:61]")
        a.label("KM_r_end")
    def dma01():
        for q in range(6): dma(0, q)
        for q in range(6): dma(1, q)
    a("s_bitcmp1_b32 0x63, s20")
    a("s_cbranch_scc1 KM_nodma")
    dma01()
    a.label("KM_nodma")
    a(f"v_lshrrev_b32 v{T}, 2, v0")
    a(f"v_mul_u32_u24 v{T}, 288, v{T}")
    a(f"v_and_b32 v{T+1}, 3, v0")
    a(f"v_lshl_add_u32 v11, v{T+1}, 3, v{T}")
    a(f"v_add_u32 v11, {WBASE}, v11")
    for b in range(1, NS):
        a(f"v_add_u32 v{11+b}, {b*STG}, v11")
    a(f"v_and_b32 v{T}, 15, v0")
    a(f"v_lshrrev_b32 v{T+1}, 4, v0")
    a(f"v_xor_b32 v{T+2}, v{T}, v{T+1}")
    a(f"v_and_b32 v{T+2}, 7, v{T+2}")
    a(f"v_lshlrev_b32 v8, 7, v{T}")
    a(f"v_lshl_add_u32 v8, v{T+2}, 4, v8")
    a("v_xor_b32 v9, 64, v8")
    a(f"v_and_b32 v{T+3}, 3, v0")
    a(f"v_xor_b32 v{T+2}, v{T+3}, v{T+1}")
    a(f"v_lshlrev_b32 v{T+12}, 7, v{T+3}")
    a(f"v_lshl_add_u32 v{T+12}, v{T+2}, 4, v{T+12}")
    a(f"v_add_u32 v{T+12}, 4096, v{T+12}")
    a(f"v_xor_b32 v{T+13}, 64, v{T+12}")
    a("s_and_b32 s23, s20, 3")
    a("s_mul_i32 s23, s23, 36")
    a(f"v_add_u32 v{T}, s23, v0")
    a(f"v_mul_u32_u24 v{T+1}, 3641, v{T}")
    a(f"v_lshrrev_b32 v{T+1}, 16, v{T+1}")
    a(f"v_mul_u32_u24 v{T+2}, 18, v{T+1}")
    a(f"v_sub_u32 v{T+2}, v{T}, v{T+2}")
    a("s_lshl_b32 s23, s22, 3")
    a(f"v_add_u32 v{T+1}, s23, v{T+1}")
    a(f"v_mul_lo_u32 v{T+1}, v{T+1}, s26")
    a(f"v_lshl_add_u32 v{T+1}, v{T+2}, 4, v{T+1}")
    a("s_mul_i32 s24, s21, 288")
    a(f"v_add_u32 v14, s24, v{T+1}")
    def wpf(stage):
        a(f"s_mov_b32 s49, {stage*64*9216}")
        a("s_mov_b32 exec_hi, 0xf")
        a.vm(f"buffer_load_dwordx4 v[{T+4}:{T+7}], v14, s[12:15], s49 offen", "PF")
        a("s_mov_b32 exec_hi, -1")
    a("s_bitcmp1_b32 0x63, s20")
    a("s_cbranch_scc1 KM_nopf0")
    for st in (2, 3): wpf(st)
    a.label("KM_nopf0")
    a("s_mul_i32 s49, s21, 18")
    a(f"v_add_u32 v{T+9}, s49, v0")
    a(f"v_lshlrev_b32 v{T+9}, 4, v{T+9}")
    a(f"v_lshl_add_u32 v10, s20, 10, v1")
    a("s_mul_i32 s48, s2, 20736")
    a("s_add_u32 s46, s48, 20736")
    phase0()
    a("s_waitcnt lgkmcnt(0)")
    stamp(7)
    a("s_barrier")
    stamp(8)
    a(f"v_mov_b32 v{T}, {PTL_OFF + 2880}")
    a(f"ds_read_b32 v{T+1}, v{T}")
    a("s_waitcnt lgkmcnt(0)")
    a(f"v_readfirstlane_b32 s3, v{T+1}")
    a("s_nop 3")
    a("s_cmp_lg_u32 s20, 7")
    a("s_cbranch_scc1 KM_p0wait")
    setflag(1)
    a("s_mov_b32 exec_hi, 0")
    a(f"v_lshlrev_b32 v{T}, 8, v0")
    a("s_lshl_b32 s49, s22, 13")
    a(f"s_add_u32 s49, s49, {FLAG_OFF}")
    poll("KM_poll0", T, "s49", 1, T+1)
    a("s_mov_b64 exec, -1")
    a.label("KM_p0wait")
    a("s_bitcmp0_b32 0x63, s20")
    a("s_cbranch_scc1 KM_p0b")
    a.vmq = []
    dma01()
    for st in (2, 3): wpf(st)
    a("s_branch KM_p0c")
    a.label("KM_p0b")
    a.label("KM_p0c")
    if stamps: a("s_memrealtime s[78:79]")
    a("s_mul_i32 s48, s2, 20736")
    a.wait_all()
    a("s_barrier")
    for ks0 in range(2):
        for i in range(2): xload(ks0, i)
    stamp(1)
    TOT = 18*NF
    for f in range(PD): fread(f)
    pend = []
    pf_left = 3 if pf_wd else 0
    for f in range(TOT):
        ks, n = divmod(f, NF)
        fill = []
        if (f+PD) % (2*NF) == 0 and f+PD < TOT:
            s1 = (f+PD)//(2*NF)
            a.wait(vm=f"D{s1}")
            a("s_barrier")
            if s1+1 <= 8:
                pend = [(s1+1, q) for q in range(6)]
        if f+PD < TOT:
            fill.append(lambda: fread(f+PD))
        if n == 0 and ks+2 < 18:
            for i in range(2):
                fill.append(lambda i=i: xload(ks+2, i))
        elif pend and n % 2 == 1:
            st, q = pend.pop(0)
            fill.append(lambda st=st, q=q: dma(st, q))
        elif n == 14 and ks % 2 == 0 and ks//2 + 4 <= 8:
            fill.append(lambda: wpf(ks//2 + 4))
        elif pf_left and ks >= 4 and n == 10:
            k = 3 - pf_left; pf_left -= 1
            def pf(k=k):
                a(f"s_add_u32 s49, s48, {k*8192}")
                a.vm(f"buffer_load_dwordx4 v[{T+4}:{T+7}], v10, s[44:47], s49 offen", "PF")
            fill.append(pf)
        if n == 0:
            a.wait(vm=f"X{ks}", lg=f"F{f}")
        else:
            a.wait(lg=f"F{f}")
        slot = ks % 3
        src = rng('a', FR + (f % NRING)*4)
        for i in range(2):
            r = acc_reg(i, n//2, n % 2) if n < 18 else sacc_reg(i, n-18)
            xsrc = rng('a', XR + slot*8 + i*4)
            c = "0" if ks == 0 else rng('v', r)
            a(f"v_mfma_f32_16x16x32_bf16 {rng('v', r)}, {src}, {xsrc}, {c}")
            if fill: fill.pop(0)()
        while fill: fill.pop(0)()
    stamp(2)
    a("s_barrier")
    a(f"v_and_b32 v{T+1}, 15, v0")
    a(f"v_lshrrev_b32 v{T+2}, 4, v0")
    a(f"v_mul_u32_u24 v{T+1}, {SL_STR}, v{T+1}")
    a(f"v_lshl_add_u32 v{T+1}, v{T+2}, 4, v{T+1}")
    a(f"s_mul_i32 s49, s20, {32*SL_STR}")
    a(f"s_add_u32 s49, s49, {SL_OFF}")
    a(f"v_add_u32 v{T+1}, s49, v{T+1}")
    for i in range(2):
        for u in range(3):
            a(f"ds_write_b128 v{T+1}, {rng('v', sacc_reg(i,u))} offset:{i*16*SL_STR + u*64}")
    a("s_waitcnt lgkmcnt(0)")
    a("s_barrier")
    a("s_lshl_b32 s32, s22, 3")
    a("s_add_u32 s32, s32, s20")
    a("s_mul_i32 s32, s32, 180")
    a("s_mul_i32 s33, s21, 9")
    a("s_lshr_b32 s33, s33, 1")
    a("s_add_u32 s32, s32, s33")
    a("s_lshl_b32 s32, s32, 11")
    a(f"s_add_u32 s32, s32, {HF_OFF}")
    a("s_mov_b32 s60, 0xbfb8aa3b")
    a("s_mov_b32 s61, 0xbfb8aa3b")
    a("s_mov_b32 s62, 1.0")
    a("s_mov_b32 s63, 1.0")
    a("s_and_b32 s33, s21, 1")

    def act(i, j, dst):
        g = acc_reg(i, j, 0); u = acc_reg(i, j, 1)
        for r in range(4): a(f"v_cvt_pk_bf16_f32 v{g+r}, 0, v{g+r}")
        for r in (0, 2): a(f"v_pk_mul_f32 v[{T+r}:{T+r+1}], v[{g+r}:{g+r+1}], s[60:61]")
        for r in range(4): a(f"v_exp_f32 v{T+r}, v{T+r}")
        for r in range(4): a(f"v_cvt_pk_bf16_f32 v{u+r}, 0, v{u+r}")
        for r in (0, 2): a(f"v_pk_add_f32 v[{T+r}:{T+r+1}], v[{T+r}:{T+r+1}], s[62:63]")
        for r in range(4): a(f"v_rcp_f32 v{T+r}, v{T+r}")
        a("s_nop 0")
        for r in (0, 2): a(f"v_pk_mul_f32 v[{T+r}:{T+r+1}], v[{g+r}:{g+r+1}], v[{T+r}:{T+r+1}]")
        for r in range(4): a(f"v_cvt_pk_bf16_f32 v{T+r}, 0, v{T+r}")
        for r in (0, 2): a(f"v_pk_mul_f32 v[{T+r}:{T+r+1}], v[{T+r}:{T+r+1}], v[{u+r}:{u+r+1}]")
        a(f"v_cvt_pk_bf16_f32 v{dst}, v{T}, v{T+1}")
        a(f"v_cvt_pk_bf16_f32 v{dst+1}, v{T+2}, v{T+3}")
    def group(gi):
        lo, le = a.newlabel("K1_g_odd"), a.newlabel("K1_g_end")
        a(f"s_add_u32 s35, s32, {gi*2048}")
        a("s_cmp_eq_u32 s33, 1")
        a(f"s_cbranch_scc1 {lo}")
        for odd in (False, True):
            if odd: a.label(lo)
            if not odd: js = [(0,1), (2,3), (4,5), (6,7), (8,)][gi]
            else: js = [(0,), (1,2), (3,4), (5,6), (7,8)][gi]
            for i in range(2):
                d0 = acc_reg(i, js[0], 0)
                if len(js) == 2:
                    act(i, js[0], d0); act(i, js[1], d0+2)
                    a(f"buffer_store_dwordx4 v[{d0}:{d0+3}], v1, s[16:19], s35 offen offset:{i*1024} {HS}")
                else:
                    act(i, js[0], d0)
                    a(f"buffer_store_dwordx2 v[{d0}:{d0+1}], v1, s[16:19], s35 offen offset:{i*1024 + (8 if odd else 0)} {HS}")
            if not odd: a(f"s_branch {le}")
        a.label(le)
    S = SAC
    a("s_cmp_gt_u32 s20, 4")
    a("s_cbranch_scc1 K1_noscan")
    a(f"v_lshl_add_u32 v{T}, s20, 6, v0")
    a(f"v_cmp_gt_u32 vcc, 288, v{T}")
    a("s_and_saveexec_b64 s[50:51], vcc")
    a(f"v_mul_u32_u24 v{T+1}, 3641, v{T}")
    a(f"v_lshrrev_b32 v{T+1}, 16, v{T+1}")
    a(f"v_mul_u32_u24 v{T+2}, 18, v{T+1}")
    a(f"v_sub_u32 v{T+2}, v{T}, v{T+2}")
    a(f"v_mul_u32_u24 v{T+3}, 160, v{T+2}")
    a(f"v_add_u32 v{T+3}, {PTL_OFF}, v{T+3}")
    a(f"ds_read_b64 v[{T+4}:{T+5}], v{T+3}")
    a(f"v_mul_u32_u24 v{T+6}, {16*SL_STR}, v{T+1}")
    a(f"v_lshl_add_u32 v{T+6}, v{T+2}, 2, v{T+6}")
    a(f"v_add_u32 v{T+6}, {SL_OFF}, v{T+6}")
    a(f"v_mov_b32 v{S+16}, 0")
    a(f"v_mov_b32 v{S+17}, 0")
    for hb in range(2):
        for t in range(8):
            tt = hb*8 + t
            a(f"ds_read_b32 v{S+2*t}, v{T+6} offset:{tt*SL_STR}")
            if t == 6: a("s_waitcnt lgkmcnt(8)")
            a(f"ds_read_b32 v{S+2*t+1}, v{T+6} offset:{tt*SL_STR + 72}")
        a("s_waitcnt lgkmcnt(0)")
        for t in range(8):
            r = S+2*t
            pr = (S+16) if t == 0 else (S+2*t-2)
            if hb == 0 and t == 0: continue
            a(f"v_fma_f32 v{r}, -v{T+5}, v{pr+1}, v{r}")
            a(f"v_fmac_f32 v{r+1}, v{T+5}, v{pr}")
            a(f"v_fmac_f32 v{r}, v{T+4}, v{pr}")
            a(f"v_fmac_f32 v{r+1}, v{T+4}, v{pr+1}")
        for t in range(8):
            tt = hb*8 + t
            if tt == 0: continue
            a(f"ds_write_b32 v{T+6}, v{S+2*t} offset:{tt*SL_STR}")
            a(f"ds_write_b32 v{T+6}, v{S+2*t+1} offset:{tt*SL_STR + 72}")
        if hb == 0:
            a(f"v_mov_b32 v{S+16}, v{S+14}")
            a(f"v_mov_b32 v{S+17}, v{S+15}")
            a("s_waitcnt lgkmcnt(0)")
    a(f"v_lshlrev_b32 v{T+7}, 3, v{T}")
    a(f"v_add_u32 v{T+7}, {EG_OFF}, v{T+7}")
    a(f"ds_write_b64 v{T+7}, v[{S+14}:{S+15}]")
    a("s_mov_b64 exec, s[50:51]")
    a.label("K1_noscan")
    a("s_cmp_eq_u32 s20, 0")
    a("s_cbranch_scc1 KM_skipg0")
    group(0)
    a.label("KM_skipg0")
    a("s_waitcnt lgkmcnt(0)")
    a("s_barrier")
    a("s_cmp_lg_u32 s20, 0")
    a("s_cbranch_scc1 K1_nopfx")
    a("v_cmp_gt_u32 vcc, 18, v0")
    a("s_and_saveexec_b64 s[50:51], vcc")
    a(f"v_mul_u32_u24 v{T+3}, 160, v0")
    a(f"v_add_u32 v{T+3}, {PTL_OFF}, v{T+3}")
    a(f"ds_read_b128 v[{T+4}:{T+7}], v{T+3} offset:16")
    a(f"v_lshlrev_b32 v{T+8}, 3, v0")
    a(f"v_add_u32 v{T+8}, {EG_OFF}, v{T+8}")
    def cfma(d, m, x, e):
        if d != e:
            a(f"v_fma_f32 v{d}, v{m}, v{x}, v{e}")
            a(f"v_fma_f32 v{d+1}, v{m}, v{x+1}, v{e+1}")
        else:
            a(f"v_fmac_f32 v{d}, v{m}, v{x}")
            a(f"v_fmac_f32 v{d+1}, v{m}, v{x+1}")
        a(f"v_fma_f32 v{d}, -v{m+1}, v{x+1}, v{d}")
        a(f"v_fmac_f32 v{d+1}, v{m+1}, v{x}")
    for sg in range(8):
        a(f"ds_read_b64 v[{S+2*sg}:{S+2*sg+1}], v{T+8} offset:{sg*144}")
    a("s_waitcnt lgkmcnt(0)")
    for sg in range(1, 8):
        cfma(S+2*sg, T+4, S+2*sg-2, S+2*sg)
    a(f"v_mov_b32 v{S+16}, v{S+14}")
    a(f"v_mov_b32 v{S+17}, v{S+15}")
    for sg in range(8):
        a(f"ds_read_b64 v[{S+2*sg}:{S+2*sg+1}], v{T+8} offset:{(8+sg)*144}")
    a("s_waitcnt lgkmcnt(0)")
    cfma(S, T+4, S+16, S)
    for sg in range(1, 8):
        cfma(S+2*sg, T+4, S+2*sg-2, S+2*sg)
    a(f"s_mul_i32 s52, s22, {576*16}")
    a(f"s_add_u32 s52, s52, {AGG_OFF}")
    a(f"v_mov_b32 v{S+16}, v{S+14}")
    a(f"v_mov_b32 v{S+17}, s3")
    a(f"v_mov_b32 v{S+18}, v{S+15}")
    a(f"v_mov_b32 v{S+19}, s3")
    a(f"buffer_store_dwordx4 v[{S+16}:{S+19}], v{T+9}, s[16:19], s52 offen sc1")
    setflag(2)
    group(0)
    a.label("K1_nopfx")
    group(1)
    group(2)
    a("s_cmp_lg_u32 s20, 0")
    a("s_cbranch_scc1 K1_nopfx2")
    a(f"v_mov_b32 v{S+16}, 0")
    a(f"v_mov_b32 v{S+17}, 0")
    a("s_cmp_eq_u32 s22, 0")
    a("s_cbranch_scc1 K1_nogather")
    a("v_cmp_gt_u32 vcc, 18, v0")
    a("s_and_saveexec_b64 s[50:51], vcc")
    G = ACC
    a.label("K1_poll")
    a(f"s_mov_b32 s52, {AGG_OFF}")
    for m in range(7):
        a(f"v_mov_b32 v{G+4*m+1}, s3")
        a(f"v_mov_b32 v{G+4*m+3}, s3")
    for m in range(7):
        a(f"s_cmp_le_u32 s22, {m}")
        a("s_cbranch_scc1 K1_gld")
        a(f"buffer_load_dwordx4 v[{G+4*m}:{G+4*m+3}], v{T+9}, s[16:19], s52 offen sc1")
        a(f"s_add_u32 s52, s52, {576*16}")
    a.label("K1_gld")
    a("s_waitcnt vmcnt(0)")
    a(f"v_mov_b32 v{T+10}, 0")
    for m in range(7):
        a(f"v_xor_b32 v{T+11}, s3, v{G+4*m+1}")
        a(f"v_or_b32 v{T+10}, v{T+10}, v{T+11}")
        a(f"v_xor_b32 v{T+11}, s3, v{G+4*m+3}")
        a(f"v_or_b32 v{T+10}, v{T+10}, v{T+11}")
    a(f"v_cmp_ne_u32 vcc, 0, v{T+10}")
    a("s_nop 4")
    a("s_cbranch_vccz K1_polled")
    a("s_sleep 2")
    a("s_branch K1_poll")
    a.label("K1_polled")
    for m in range(7):
        a(f"v_mov_b32 v{S+2*m}, v{G+4*m}")
        a(f"v_mov_b32 v{S+2*m+1}, v{G+4*m+2}")
    for m in range(7):
        a(f"s_cmp_le_u32 s22, {m}")
        a("s_cbranch_scc1 K1_gdn")
        cfma(S+2*m, T+6, S+16, S+2*m)
        a(f"v_mov_b32 v{S+16}, v{S+2*m}")
        a(f"v_mov_b32 v{S+17}, v{S+2*m+1}")
    a.label("K1_gdn")
    a("s_mov_b64 exec, s[50:51]")
    a.label("K1_nogather")
    a("v_cmp_gt_u32 vcc, 18, v0")
    a("s_and_saveexec_b64 s[50:51], vcc")
    for hb in range(2):
        for sg in range(8):
            a(f"ds_read_b64 v[{S+2*sg}:{S+2*sg+1}], v{T+8} offset:{(hb*8+sg)*144}")
        a("s_waitcnt lgkmcnt(0)")
        for sg in range(8):
            prev = (S+16) if sg == 0 else (S+2*sg-2)
            a(f"ds_write_b64 v{T+8}, v[{prev}:{prev+1}] offset:{(hb*8+sg)*144}")
            cfma(S+2*sg, T+4, prev, S+2*sg)
        a(f"v_mov_b32 v{S+16}, v{S+14}")
        a(f"v_mov_b32 v{S+17}, v{S+15}")
        a("s_waitcnt lgkmcnt(0)")
    a("s_mov_b64 exec, s[50:51]")
    a.label("K1_nopfx2")
    group(3)
    group(4)
    if split:
        a("s_cmp_lg_u32 s20, 1")
        a("s_cbranch_scc1 KM_nochk")
        a("s_mov_b64 exec, 1")
        a(f"v_mov_b32 v{T+4}, 0")
        a("s_lshl_b32 s49, s2, 2")
        a(f"s_add_u32 s49, s49, {FLAG2_OFF}")
        a(f"buffer_store_dword v{T+4}, v{T+4}, s[16:19], s49 offen")
        a("s_mov_b64 exec, -1")
        a("s_branch KM_nochk")
    a.label("KM_nochk")
    a("s_lshr_b32 s50, s20, 1")
    a("s_and_b32 s51, s20, 1")
    a("s_lshl_b32 s53, s51, 1")
    a("s_sub_u32 s53, s53, s33")
    a("s_lshl_b32 s52, s50, 6")
    a(f"v_add_u32 v{T}, s52, v0")
    a(f"v_mul_u32_u24 v{T+1}, {SL_STR}, v{T}")
    a("s_lshl_b32 s54, s53, 3")
    a(f"s_add_u32 s54, s54, {SL_OFF}")
    a(f"v_add_u32 v{T+1}, s54, v{T+1}")
    a(f"v_and_b32 v{T+2}, 15, v0")
    a(f"v_lshlrev_b32 v{T+2}, 3, v{T+2}")
    a("s_mul_i32 s54, s53, 320")
    a(f"s_add_u32 s54, s54, {PTL_OFF}")
    a(f"v_add_u32 v{T+2}, s54, v{T+2}")
    a(f"v_mov_b32 v{T+4}, s54")
    a(f"v_lshrrev_b32 v{T+3}, 4, v{T}")
    a(f"v_mul_u32_u24 v{T+3}, 144, v{T+3}")
    a("s_lshl_b32 s55, s53, 4")
    a(f"s_add_u32 s55, s55, {EG_OFF}")
    a(f"v_add_u32 v{T+3}, s55, v{T+3}")
    a(f"v_lshrrev_b32 v{T+5}, 5, v0")
    a(f"v_mul_u32_u24 v{T+5}, {180*2048}, v{T+5}")
    a(f"v_bfe_u32 v{T+6}, v0, 4, 1")
    a(f"v_lshl_add_u32 v{T+5}, v{T+6}, 10, v{T+5}")
    a(f"v_and_b32 v{T+6}, 15, v0")
    a(f"v_lshl_add_u32 v{T+5}, v{T+6}, 4, v{T+5}")
    a("s_lshl_b32 s56, s22, 3")
    a("s_lshl_b32 s57, s50, 1")
    a("s_add_u32 s56, s56, s57")
    a("s_mul_i32 s56, s56, 180")
    a("s_add_u32 s56, s56, 144")
    a("s_lshl_b32 s56, s56, 11")
    a(f"s_add_u32 s56, s56, {HF_OFF}")
    a("s_mul_i32 s55, s21, 9")
    a("s_add_u32 s55, s55, s53")
    a("s_lshr_b32 s55, s55, 1")
    def Rb(n): return ACC + 16*n
    for n in range(6):
        R = Rb(n); it, h = divmod(n, 2)
        a(f"ds_read_b64 v[{R}:{R+1}], v{T+1} offset:{32*it+8*h}")
        a(f"ds_read_b64 v[{R+2}:{R+3}], v{T+1} offset:{32*it+8*h+72}")
        a(f"ds_read_b64 v[{R+4}:{R+5}], v{T+2} offset:{1280*it+320*h+32}")
        a(f"ds_read_b64 v[{R+6}:{R+7}], v{T+2} offset:{1280*it+320*h+192}")
        a(f"ds_read_b64 v[{R+12}:{R+13}], v{T+4} offset:{1280*it+320*h+8}")
        a(f"ds_read_b64 v[{R+14}:{R+15}], v{T+4} offset:{1280*it+320*h+168}")
        if n % 2 == 1: a("s_waitcnt lgkmcnt(0)")
    a("s_barrier")
    for n in range(6):
        R = Rb(n); it, h = divmod(n, 2)
        a(f"ds_read_b128 v[{R+8}:{R+11}], v{T+3} offset:{64*it+16*h}")
    for it in range(3):
        if it == 2:
            a("s_cmp_eq_u32 s51, 1")
            a("s_cbranch_scc1 K1_fin_end")
        a(f"s_add_u32 s57, s55, {2*it}")
        a("s_lshr_b32 s58, s57, 2")
        a("s_lshl_b32 s58, s58, 11")
        a("s_add_u32 s58, s58, s56")
        a("s_and_b32 s59, s57, 3")
        a("s_lshl_b32 s59, s59, 8")
        a("s_add_u32 s58, s58, s59")
        a(f"s_waitcnt lgkmcnt({4-2*it})")
        D = Rb(2*it)
        for h in range(2):
            R = Rb(2*it+h)
            for e in range(2):
                gr, gi = R+e, R+2+e
                pr, pi = R+4+2*e, R+5+2*e
                fr, fi = R+8+2*e, R+9+2*e
                cr, ci = R+12+2*e, R+13+2*e
                a(f"v_fmac_f32 v{gr}, v{pr}, v{fr}")
                a(f"v_fmac_f32 v{gi}, v{pr}, v{fi}")
                a(f"v_fma_f32 v{gr}, -v{pi}, v{fi}, v{gr}")
                a(f"v_fmac_f32 v{gi}, v{pi}, v{fr}")
                a(f"v_mul_f32 v{pr}, v{cr}, v{gr}")
                a(f"v_mul_f32 v{pi}, v{cr}, v{gi}")
                a(f"v_fma_f32 v{pr}, -v{ci}, v{gi}, v{pr}")
                a(f"v_fmac_f32 v{pi}, v{ci}, v{gr}")
            a(f"v_cvt_pk_bf16_f32 v{D+2*h}, v{R+4}, v{R+5}")
            a(f"v_cvt_pk_bf16_f32 v{D+2*h+1}, v{R+6}, v{R+7}")
        if it == 0:
            l1, l2 = a.newlabel("KF_h"), a.newlabel("KF_e")
            a("s_cmp_lt_i32 s53, 0")
            a(f"s_cbranch_scc1 {l1}")
            a(f"buffer_store_dwordx4 v[{D}:{D+3}], v{T+5}, s[16:19], s58 offen {HS}")
            a(f"s_branch {l2}")
            a.label(l1)
            a(f"buffer_store_dwordx2 v[{D+2}:{D+3}], v{T+5}, s[16:19], s58 offen offset:8 {HS}")
            a.label(l2)
        elif it == 2:
            l1, l2 = a.newlabel("KF_h"), a.newlabel("KF_e")
            a("s_cmp_eq_u32 s33, 0")
            a(f"s_cbranch_scc1 {l1}")
            a(f"buffer_store_dwordx4 v[{D}:{D+3}], v{T+5}, s[16:19], s58 offen {HS}")
            a(f"s_branch {l2}")
            a.label(l1)
            a(f"buffer_store_dwordx2 v[{D}:{D+1}], v{T+5}, s[16:19], s58 offen {HS}")
            a.label(l2)
        else:
            a(f"buffer_store_dwordx4 v[{D}:{D+3}], v{T+5}, s[16:19], s58 offen {HS}")
    a.label("K1_fin_end")
    stamp(3)
    if split:
        if stamps:
            a("s_waitcnt vmcnt(0)")
            stamp(4)
            a("s_waitcnt lgkmcnt(0)")
            for n in range(1, 5):
                a(f"s_sub_u32 s{44+n}, s{82+2*n}, s82")
                a(f"v_mov_b32 v{16+n}, s{44+n}")
            a("v_mov_b32 v16, s82")
            a("s_lshl_b32 s36, s2, 3")
            a("s_add_u32 s36, s36, s20")
            a("s_lshl_b32 s36, s36, 6")
            a("s_add_u32 s36, s36, 0xF000000")
            a("v_mov_b32 v28, 0")
            a("buffer_store_dwordx4 v[16:19], v28, s[16:19], s36 offen")
            a("buffer_store_dword v20, v28, s[16:19], s36 offen offset:16")
            a("s_waitcnt vmcnt(0)")
        a.label("K1_done")
        a("s_endpgm")
        return a.text(), kernel_desc(name, NARCH+NACC, NARCH)
    a("s_waitcnt lgkmcnt(0)")
    if stamps:
        a("s_waitcnt lgkmcnt(0)")
        a("s_sub_u32 s49, s96, s82")
        a("s_sub_u32 s50, s98, s82")
        a("s_sub_u32 s51, s78, s82")
        a("s_sub_u32 s52, s84, s82")
        a(f"v_mov_b32 v{T}, s49")
        a(f"v_mov_b32 v{T+1}, s50")
        a(f"v_mov_b32 v{T+2}, s51")
        a(f"v_mov_b32 v{T+3}, s52")
        a("s_lshl_b32 s49, s2, 3")
        a("s_add_u32 s49, s49, s20")
        a("s_lshl_b32 s49, s49, 4")
        a("s_add_u32 s49, s49, 0xF100000")
        a(f"v_mov_b32 v{T+4}, 0")
        a(f"buffer_store_dwordx4 v[{T}:{T+3}], v{T+4}, s[16:19], s49 offen")
    a("s_barrier")
    a("s_cmp_lt_u32 s20, 4")
    a("s_cbranch_scc1 KM_p2")
    a("s_waitcnt vmcnt(0)")
    a("s_barrier")
    a("s_endpgm")
    a.label("KM_p2")
    a("s_mov_b32 s4, s10")
    a("s_mov_b32 s5, s11")
    a.vmq = []; a.lgq = []
    k2.setup(a)
    a("s_cmp_lg_u32 s25, 3")
    a("s_cbranch_scc1 KM_nocst")
    a("v_lshlrev_b32 v88, 8, v0")
    for qq in range(4):
        a(f"s_mov_b32 s49, {FLAG_OFF + qq*16384}")
        poll(f"KM_pollc{qq}", 88, "s49", 2, 89)
    a.label("KM_nocst")
    for st in range(4):
        for q in range(7): k2.dma(a, st, q)
    a("s_waitcnt vmcnt(28)")
    a("s_barrier")
    a("s_cmp_lg_u32 s20, 0")
    a("s_cbranch_scc1 KM_p2n")
    if wbl2:
        a("buffer_wbl2 sc1")
        a("s_waitcnt vmcnt(0)")
    setflag(3, 88)
    a("s_mov_b32 exec_hi, 0")
    a("v_lshlrev_b32 v88, 8, v0")
    a("s_lshr_b32 s44, s22, 1")
    a("s_lshl_b32 s44, s44, 13")
    a(f"s_add_u32 s44, s44, {FLAG_OFF}")
    poll("KM_poll2", 88, "s44", 3, 89)
    a("s_mov_b64 exec, -1")
    a.label("KM_p2n")
    a("s_waitcnt vmcnt(0)")
    a("s_barrier")
    a.vmq = []
    stamp(4)
    nost = lambda n: None
    k2.tail_pre(a)
    saved = list(a.vmq)
    a("s_cmp_eq_u32 s25, 3")
    a("s_cbranch_scc1 K2_ssm")
    k2.body(a, 48, nost, hflag="sc1", pre_dma_done=True)
    a("s_branch K2_tail")
    a.label("K2_ssm")
    a.vmq = list(saved); a.lgq = []
    k2.body(a, 36, nost, hflag="sc1", pre_dma_done=True)
    a.label("K2_tail")
    stamp(5)
    a("s_nop 7")
    k2.tail(a, nost, mega=(setflag, poll))
    if stamps:
        a("s_waitcnt vmcnt(0)")
        stamp(6)
        a("s_waitcnt lgkmcnt(0)")
        for n in range(1, 7):
            a(f"s_sub_u32 s{44+n}, s{82+2*n}, s82")
            a(f"v_mov_b32 v{16+n}, s{44+n}")
        a("v_mov_b32 v16, s82")
        a("s_lshl_b32 s36, s2, 2")
        a("s_add_u32 s36, s36, s20")
        a("s_lshl_b32 s36, s36, 5")
        a("s_add_u32 s36, s36, 0xF000000")
        a("v_mov_b32 v28, 0")
        a("buffer_store_dwordx4 v[16:19], v28, s[16:19], s36 offen")
        a("buffer_store_dwordx4 v[20:23], v28, s[16:19], s36 offen offset:16")
        a("s_waitcnt vmcnt(0)")
    a.label("K1_done")
    a("s_endpgm")
    return a.text(), kernel_desc(name, NARCH+NACC, NARCH)

if __name__ == "__main__":
    body, desc = gen_km(stamps=("stamps" in sys.argv), wbl2=("wbl2" in sys.argv))
    hdr_src = open("parallel_sum__ssm_conv_s5__swiglu_ffn__prompt.s.ref").read().split("\n")
    head = []
    for l in hdr_src:
        if "@launch" in l: continue
        if not l.startswith(";"): break
        head.append(l)
    head.append(f"; @launch grid=(256,1,1) block=(512,1,1) lds={KM_LDS}")
    out = "\n".join(head) + "\n.amdgcn_target \"amdgcn-amd-amdhsa--gfx950\"\n" + body + desc
    open(sys.argv[1], "w").write(out)
```

```python
from common import *
import sys
import k2
ACC = 16
SAC = 160
TMP = 184
NARCH = 200
XR = 0
FR = 24
NRING = 8
NACC = 56
NS = 3
SSTG = 4608
WBASE = NS*SSTG
STG = 36864
PD = 5
K1_LDS = WBASE + NS*STG
SL_OFF = 16384
SL_STR = 208
EG_OFF = SL_OFF + 256*SL_STR
PTL_OFF = K1_LDS
KM_LDS = k2.K2_LDS
LOG2E = 0x3fb8aa3b
INV2PI = 0x3e22f983
def acc_reg(i, j, m): return ACC + ((j*2 + i)*2 + m)*4
def sacc_reg(i, u): return SAC + (u*2 + i)*4
def rng(t, b, n=4): return f"{t}[{b}:{b+n-1}]"

def gen_km(name="parallel_sum__ssm_conv_s5__swiglu_ffn__prompt_kernel", stamps=False, pf_wd=True, split=False, wbl2=False):
    HS = "" if (split or wbl2) else "sc1"
    a = Asm()
    def stamp(n):
        if stamps:
            a(f"s_memrealtime s[{82+2*n}:{83+2*n}]")
    T = TMP
    a.raw(kernel_header(name))
    a("s_cmp_ge_u32 s2, 256")
    a("s_cbranch_scc1 K1_done")
    stamp(0)
    a("s_load_dwordx4 s[4:7], s[0:1], 80")
    a("s_load_dwordx2 s[8:9], s[0:1], 120")
    a("s_load_dwordx4 s[36:39], s[0:1], 24")
    a("s_load_dwordx2 s[10:11], s[0:1], 96")
    a("s_load_dwordx4 s[68:71], s[0:1], 0")
    a("s_load_dwordx2 s[72:73], s[0:1], 16")
    a("s_load_dwordx2 s[74:75], s[0:1], 56")
    a("s_load_dwordx4 s[76:79], s[0:1], 40")
    a("s_load_dwordx2 s[80:81], s[0:1], 112")
    a("v_lshrrev_b32 v15, 6, v0")
    a("v_and_b32 v0, 63, v0")
    a("v_readfirstlane_b32 s20, v15")
    a("v_lshlrev_b32 v1, 4, v0")
    a("s_and_b32 s21, s2, 7")
    a("s_lshr_b32 s22, s2, 3")
    a("s_and_b32 s23, s22, 3")
    a("s_lshl_b32 s21, s21, 2")
    a("s_add_u32 s21, s21, s23")
    a("s_lshr_b32 s22, s22, 2")
    a("s_waitcnt lgkmcnt(0)")
    a("s_cmp_gt_u32 s20, 1")
    a("s_cbranch_scc1 KM_noxl")
    srd(a, 48, 68, 2048*576*2)
    a("v_lshrrev_b32 v48, 4, v0")
    a("v_and_b32 v49, 15, v0")
    a("v_mul_u32_u24 v50, 1152, v48")
    a("v_lshl_add_u32 v50, v49, 3, v50")
    a("s_lshl_b32 s52, s22, 8")
    a("s_lshl_b32 s53, s21, 3")
    a("s_add_u32 s52, s52, s53")
    a("s_lshl_b32 s53, s20, 2")
    a("s_add_u32 s52, s52, s53")
    a("s_mul_i32 s53, s52, 1152")
    for i in range(9):
        a(f"buffer_load_dwordx2 v[{16+2*i}:{17+2*i}], v50, s[48:51], s53 offen offset:{i*128}")
    a.label("KM_noxl")
    a("s_and_b32 s23, s20, 3")
    a("s_lshl_b32 s23, s23, 4")
    a("s_mul_i32 s24, s21, 288")
    a("s_movk_i32 s25, 3641")
    a("s_movk_i32 s26, 9216")
    a("s_mul_i32 s27, s20, 4608")
    a(f"s_add_u32 s27, s27, {WBASE}")
    a("s_mul_i32 s29, s20, 576")
    a("s_lshl_b32 s28, s22, 3")
    a("s_add_u32 s28, s28, s20")
    a(f"s_mul_i32 s28, s28, {18*2048}")
    if XNF_OFF: a(f"s_add_u32 s28, s28, {XNF_OFF}")
    for q in range(5):
        d = 2+q
        if q: a(f"v_add_u32 v{T}, {q*64}, v0")
        else: a(f"v_mov_b32 v{T}, v0")
        a(f"v_mul_lo_u32 v{T+1}, v{T}, s25")
        a(f"v_lshrrev_b32 v{T+1}, 16, v{T+1}")
        a(f"v_mul_u32_u24 v{T+2}, 18, v{T+1}")
        a(f"v_sub_u32 v{T+2}, v{T}, v{T+2}")
        a(f"v_add_u32 v{T+1}, s23, v{T+1}")
        a(f"v_and_b32 v{T+3}, 0x23, v{T+1}")
        a(f"v_bfe_u32 v{T+4}, v{T+1}, 2, 2")
        a(f"v_lshl_add_u32 v{T+3}, v{T+4}, 3, v{T+3}")
        a(f"v_bfe_u32 v{T+4}, v{T+1}, 4, 1")
        a(f"v_lshl_add_u32 v{T+3}, v{T+4}, 2, v{T+3}")
        a(f"v_mul_lo_u32 v{T+3}, v{T+3}, s26")
        a(f"v_lshl_add_u32 v{T+3}, v{T+2}, 4, v{T+3}")
        a(f"v_add_u32 v{d}, s24, v{T+3}")
    a("s_mul_i32 s23, s20, 36")
    a(f"v_add_u32 v{T}, s23, v0")
    a(f"v_lshrrev_b32 v{T+1}, 3, v{T}")
    a(f"v_xor_b32 v{T+2}, v{T}, v{T+1}")
    a(f"v_and_b32 v{T+2}, 7, v{T+2}")
    a("s_mul_i32 s23, s21, 18")
    a("s_cmp_lt_u32 s20, 4")
    a("s_cselect_b32 s24, 0, 18")
    a("s_sub_u32 s23, s23, s24")
    a(f"v_add_u32 v{T+1}, s23, v{T+1}")
    a(f"v_mul_u32_u24 v{T+1}, 1152, v{T+1}")
    a(f"v_lshl_add_u32 v7, v{T+2}, 4, v{T+1}")
    a("s_waitcnt lgkmcnt(0)")
    a("s_cmp_lt_u32 s20, 4")
    a("s_cselect_b32 s12, s4, s6")
    a("s_cselect_b32 s13, s5, s7")
    a("s_cselect_b32 s40, s36, s38")
    a("s_cselect_b32 s41, s37, s39")
    a("s_and_b32 s13, s13, 0xffff")
    a(f"s_mov_b32 s14, {576*4608*2}")
    a("s_mov_b32 s15, 0x00020000")
    a("s_and_b32 s41, s41, 0xffff")
    a(f"s_mov_b32 s42, {576*576*2}")
    a("s_mov_b32 s43, 0x00020000")
    srd(a, 16, 8, WS_BYTES)
    srd(a, 44, 10, 4608*576*2)
    srd(a, 64, 80, 256)
    a("s_lshl_b32 s101, s2, 8")
    a(f"s_add_u32 s101, s101, {FLAG_OFF}")
    def setflag(val, t0=T+10):
        a("s_mov_b64 exec, 1")
        a(f"s_add_u32 s100, s3, {val}")
        a(f"v_mov_b32 v{t0}, s100")
        a(f"v_mov_b32 v{t0+1}, 0")
        a(f"buffer_store_dword v{t0}, v{t0+1}, s[16:19], s101 offen sc1")
        a("s_mov_b64 exec, -1")
    def poll(lbl, vaddr, soff, stage, t0):
        a.label(lbl)
        a(f"buffer_load_dword v{t0}, v{vaddr}, s[16:19], {soff} offen sc1")
        a(f"s_add_u32 s100, s3, {stage}")
        a("s_waitcnt vmcnt(0)")
        a(f"v_subrev_u32 v{t0}, s100, v{t0}")
        a(f"v_cmp_le_u32 vcc, {8-stage}, v{t0}")
        a("s_nop 4")
        a(f"s_cbranch_vccz {lbl}_ok")
        a("s_sleep 2")
        a(f"s_branch {lbl}")
        a.label(lbl + "_ok")

    def dma(stage, q):
        b = stage % NS
        if q < 5:
            a(f"s_add_u32 m0, s27, {b*STG + q*1024}")
            a(f"s_mov_b32 s30, {stage*64*9216}")
            if q == 4: a("s_mov_b32 exec_hi, 0")
            a.vm(f"buffer_load_dwordx4 v{2+q}, s[12:15], s30 offen lds", f"D{stage}")
            if q == 4: a("s_mov_b32 exec_hi, -1")
        else:
            a(f"s_add_u32 m0, s29, {b*SSTG}")
            a(f"s_movk_i32 s30, {stage*128}")
            a("s_mov_b32 exec_hi, 0xf")
            a.vm(f"buffer_load_dwordx4 v7, s[40:43], s30 offen lds", f"D{stage}")
            a("s_mov_b32 exec_hi, -1")
    def xload(ks, i):
        slot = ks % 3
        if i == 0:
            a(f"s_add_u32 s31, s28, {ks*2048}")
        a.vm(f"buffer_load_dwordx4 {rng('a', XR + slot*8 + i*4)}, v1, s[16:19], s31 offen offset:{i*1024} sc1", f"X{ks}")
    NF = 21
    def fread(f):
        ks, n = divmod(f, NF)
        stage, sub = divmod(ks, 2)
        b = stage % NS
        dst = FR + (f % NRING)*4
        if n < 18:
            j, m = divmod(n, 2)
            off = m*18432 + sub*9216 + j*32
            a.lg(f"ds_read_b64_tr_b16 {rng('a', dst, 2)}, v{11+b} offset:{off}", f"F{f}")
            a.lg(f"ds_read_b64_tr_b16 {rng('a', dst+2, 2)}, v{11+b} offset:{off+4608}", f"F{f}")
        else:
            u = n - 18
            areg = (8 + sub) if u < 2 else (T+12+sub)
            a.lg(f"ds_read_b128 {rng('a', dst)}, v{areg} offset:{b*SSTG + (2048 if u == 1 else 0)}", f"F{f}")

    def cst():
        a("s_sub_u32 s52, s20, 2")
        a("s_lshl_b32 s52, s52, 6")
        a("v_add_u32 v40, s52, v0")
        a(f"s_mov_b32 s57, {CST_OFF}")
        a("s_mov_b32 s58, 7456541")
        a("s_mul_i32 s59, s2, 324")
        for rnd in range(2):
            B = 16 + rnd*12
            a(f"v_add_u32 v41, {rnd*192}, v40")
            a("v_min_u32 v41, 323, v41")
            a("v_add_u32 v41, s59, v41")
            a("v_mul_hi_u32 v42, v41, s58")
            a("v_mul_u32_u24 v43, 576, v42")
            a("v_sub_u32 v43, v41, v43")
            a("v_cmp_le_u32 vcc, 72, v42")
            a("v_subrev_u32 v44, 72, v42")
            a("v_mov_b32 v46, s76")
            a("v_mov_b32 v47, s77")
            a("v_mov_b32 v48, s78")
            a("v_mov_b32 v49, s79")
            a("v_cndmask_b32 v44, v42, v44, vcc")
            a("v_cndmask_b32 v46, v46, v48, vcc")
            a("v_cndmask_b32 v47, v47, v49, vcc")
            a(f"v_mov_b32 v{B+9}, 0x80008000")
            a(f"v_cndmask_b32 v{B+9}, 0, v{B+9}, vcc")
            a("v_mul_u32_u24 v45, 9216, v44")
            a("v_lshl_add_u32 v45, v43, 1, v45")
            a("v_lshlrev_b32 v50, 1, v43")
            a("v_add_u32 v51, 1, v50")
            a("v_cndmask_b32 v50, v50, v51, vcc")
            a("v_and_b32 v51, 0xffffffe3, v50")
            a("v_bfe_u32 v60, v50, 2, 1")
            a("v_lshl_add_u32 v51, v60, 4, v51")
            a("v_bfe_u32 v60, v50, 3, 2")
            a("v_lshl_add_u32 v50, v60, 2, v51")
            a("v_mul_u32_u24 v50, 1152, v50")
            a(f"v_lshl_add_u32 v{B+8}, v44, 4, v50")
            a("v_add_co_u32 v46, vcc, v46, v45")
            a("s_nop 1")
            a("v_addc_co_u32 v47, vcc, 0, v47, vcc")
            a("v_add_co_u32 v48, vcc, 4608, v46")
            a("s_nop 1")
            a("v_addc_co_u32 v49, vcc, 0, v47, vcc")
            for e in range(8):
                base = "v[46:47]" if e < 4 else "v[48:49]"
                a(f"global_load_ushort v{B+e}, {base}, off offset:{(e%4)*1152}")
        a("s_waitcnt vmcnt(0)")
        for rnd in range(2):
            B = 16 + rnd*12
            for r in range(4):
                a(f"v_lshl_or_b32 v{52+4*rnd+r}, v{B+1+2*r}, 16, v{B+2*r}")
                a(f"v_xor_b32 v{52+4*rnd+r}, v{B+9}, v{52+4*rnd+r}")
            a(f"buffer_store_dwordx4 v[{52+4*rnd}:{55+4*rnd}], v{B+8}, s[16:19], s57 offen sc1")
    def phase0():
        a("s_cmp_gt_u32 s20, 1")
        a("s_cbranch_scc1 KM_r1")
        a("s_lshl_b32 s52, s22, 8")
        a("s_lshl_b32 s53, s21, 3")
        a("s_add_u32 s52, s52, s53")
        a("s_lshl_b32 s53, s20, 2")
        a("s_add_u32 s52, s52, s53")
        a("v_add_u32 v36, s52, v48")
        a("v_lshrrev_b32 v37, 5, v36")
        a(f"v_mul_u32_u24 v37, {18*2048}, v37")
        a("v_bfe_u32 v38, v36, 4, 1")
        a("v_lshl_add_u32 v37, v38, 10, v37")
        a("v_and_b32 v38, 15, v36")
        a("v_lshl_add_u32 v37, v38, 4, v37")
        a("v_lshrrev_b32 v38, 3, v49")
        a("v_lshl_add_u32 v37, v38, 11, v37")
        a("v_bfe_u32 v38, v49, 1, 2")
        a("v_lshl_add_u32 v37, v38, 8, v37")
        a("v_and_b32 v38, 1, v49")
        a("v_lshl_add_u32 v37, v38, 3, v37")
        a("v_mov_b32 v38, 0x3f803f80")
        a("v_mov_b32 v34, 0")
        a("v_mov_b32 v35, 0")
        a("s_waitcnt vmcnt(0)")
        for i in range(18):
            d = 34 + (i & 1)
            a(f"v_dot2_f32_bf16 v{d}, v{16+i}, v38, v{d}")
        a("s_nop 2")
        a("v_add_f32 v34, v34, v35")
        def red(v):
            for sh in (8, 4, 2, 1):
                a("s_nop 1")
                a(f"v_add_f32_dpp v{v}, v{v}, v{v} row_ror:{sh} row_mask:0xf bank_mask:0xf")
        red(34)
        a("v_mul_f32 v34, 0x3ae38e39, v34")
        a("v_mov_b32 v35, 0")
        a("v_mov_b32 v36, 0")
        for i in range(18):
            t = 40 + 2*(i & 3)
            a(f"v_lshlrev_b32 v{t}, 16, v{16+i}")
            a(f"v_and_b32 v{t+1}, 0xffff0000, v{16+i}")
            a(f"v_sub_f32 v{t}, v{t}, v34")
            a(f"v_sub_f32 v{t+1}, v{t+1}, v34")
            a(f"v_fmac_f32 v35, v{t}, v{t}")
            a(f"v_fmac_f32 v36, v{t+1}, v{t+1}")
        a("v_add_f32 v35, v35, v36")
        red(35)
        a("v_mul_f32 v35, 0x3ae38e39, v35")
        a("v_cvt_pk_bf16_f32 v34, 0, v34")
        a("v_cvt_pk_bf16_f32 v35, 0, v35")
        a("v_add_f32 v35, 0x3727c5ac, v35")
        a("v_cvt_pk_bf16_f32 v35, 0, v35")
        a("v_sqrt_f32 v35, v35")
        a("s_nop 0")
        a("v_cvt_pk_bf16_f32 v35, 0, v35")
        a("v_rcp_f32 v35, v35")
        a("s_nop 0")
        for i in range(18):
            t = 40 + 2*(i & 3)
            a(f"v_lshlrev_b32 v{t}, 16, v{16+i}")
            a(f"v_and_b32 v{t+1}, 0xffff0000, v{16+i}")
            a(f"v_sub_f32 v{t}, v{t}, v34")
            a(f"v_sub_f32 v{t+1}, v{t+1}, v34")
            a(f"v_cvt_pk_bf16_f32 v{t}, 0, v{t}")
            a(f"v_cvt_pk_bf16_f32 v{t+1}, 0, v{t+1}")
            a(f"v_mul_f32 v{t}, v{t}, v35")
            a(f"v_mul_f32 v{t+1}, v{t+1}, v35")
            a(f"v_cvt_pk_bf16_f32 v{16+i}, v{t}, v{t+1}")
            if i & 1:
                a(f"s_mov_b32 s53, {XNF_OFF + (i//2)*4096}")
                a(f"buffer_store_dwordx2 v[{16+i-1}:{16+i}], v37, s[16:19], s53 offen sc1")
        a("s_waitcnt vmcnt(0)")
        a("s_branch KM_r_end")
        a.label("KM_r1")
        a("s_cmp_gt_u32 s20, 4")
        a("s_cbranch_scc1 KM_r2")
        cst()
        a("s_branch KM_r_end")
        a.label("KM_r2")
        a("s_cmp_lg_u32 s20, 6")
        a("s_cbranch_scc1 KM_r3")
        a("s_memrealtime s[52:53]")
        a("s_waitcnt lgkmcnt(0)")
        a("s_lshl_b32 s52, s52, 3")
        a("s_or_b32 s52, s52, 8")
        a("s_mov_b64 exec, 1")
        a("v_mov_b32 v16, s52")
        a("v_mov_b32 v17, 0")
        a("v_mov_b32 v18, 0")
        a("v_mov_b32 v19, s52")
        a("buffer_atomic_cmpswap v[16:17], v18, s[64:67], 0 offen sc0")
        a("s_waitcnt vmcnt(0)")
        a("v_cmp_eq_u32 vcc, 0, v16")
        a("s_nop 1")
        a("v_cndmask_b32 v16, v16, v19, vcc")
        a(f"v_mov_b32 v18, {PTL_OFF + 2880}")
        a("ds_write_b32 v18, v16")
        a("s_mov_b64 exec, -1")
        a("s_branch KM_r_end")
        a.label("KM_r3")
        a("s_cmp_lg_u32 s20, 5")
        a("s_cbranch_scc1 KM_r_end")
        a("s_mul_i32 s52, s21, 18")
        a("v_min_u32 v16, 17, v0")
        a("v_add_u32 v17, s52, v16")
        a("v_lshlrev_b32 v17, 1, v17")
        a("global_load_ushort v18, v17, s[70:71]")
        a("global_load_ushort v19, v17, s[72:73]")
        a("global_load_ushort v20, v17, s[74:75]")
        a("s_waitcnt vmcnt(0)")
        a("v_lshlrev_b32 v18, 16, v18")
        a("v_lshlrev_b32 v19, 16, v19")
        a("v_lshlrev_b32 v20, 16, v20")
        a(f"v_mul_f32 v20, {LOG2E}, v20")
        a("v_exp_f32 v20, v20")
        a("s_nop 0")
        a("v_cvt_pk_bf16_f32 v20, 0, v20")
        a("v_mul_f32 v21, v20, v18")
        a("v_mul_f32 v22, v20, v19")
        a(f"v_mul_f32 v21, {LOG2E}, v21")
        a(f"v_mul_f32 v22, {INV2PI}, v22")
        a("v_exp_f32 v21, v21")
        a("v_fract_f32 v22, v22")
        a("s_nop 0")
        a("v_cos_f32 v23, v22")
        a("v_sin_f32 v24, v22")
        a("s_nop 0")
        a("v_mul_f32 v64, v21, v23")
        a("v_mul_f32 v65, v21, v24")
        a("v_add_f32 v25, -1.0, v64")
        a("v_mul_f32 v26, v18, v18")
        a("v_fmac_f32 v26, v19, v19")
        a("v_rcp_f32 v27, v26")
        a("v_mul_f32 v66, v25, v18")
        a("v_fmac_f32 v66, v65, v19")
        a("v_mul_f32 v67, v65, v18")
        a("v_fma_f32 v67, -v25, v19, v67")
        a("v_fma_f32 v28, -v26, v27, 1.0")
        a("v_fmac_f32 v27, v28, v27")
        a("v_add_f32 v27, v27, v27")
        a("v_mul_f32 v66, v66, v27")
        a("v_mul_f32 v67, v67, v27")
        a("v_mov_b32 v72, v64")
        a("v_mov_b32 v73, v65")
        def cmul(d, x, y):
            a(f"v_mul_f32 v{d}, v{x}, v{y}")
            a(f"v_mul_f32 v{d+1}, v{x}, v{y+1}")
            a(f"v_fma_f32 v{d}, -v{x+1}, v{y+1}, v{d}")
            a(f"v_fmac_f32 v{d+1}, v{x+1}, v{y}")
        for j in range(1, 16):
            cmul(72+2*j, 64, 70+2*j)
        a("v_mov_b32 v68, v102")
        a("v_mov_b32 v69, v103")
        cmul(30, 68, 68); cmul(32, 30, 30); cmul(30, 32, 32); cmul(70, 30, 30)
        a("v_mul_u32_u24 v17, 160, v16")
        a(f"v_add_u32 v17, {PTL_OFF}, v17")
        a("v_cmp_gt_u32 vcc, 18, v0")
        a("s_and_saveexec_b64 s[60:61], vcc")
        for q in range(10):
            a(f"ds_write_b128 v17, v[{64+4*q}:{67+4*q}] offset:{q*16}")
        a("s_mov_b64 exec, s[60:61]")
        a.label("KM_r_end")
    def dma01():
        for q in range(6): dma(0, q)
        for q in range(6): dma(1, q)
    a("s_bitcmp1_b32 0x63, s20")
    a("s_cbranch_scc1 KM_nodma")
    dma01()
    a.label("KM_nodma")
    a(f"v_lshrrev_b32 v{T}, 2, v0")
    a(f"v_mul_u32_u24 v{T}, 288, v{T}")
    a(f"v_and_b32 v{T+1}, 3, v0")
    a(f"v_lshl_add_u32 v11, v{T+1}, 3, v{T}")
    a(f"v_add_u32 v11, {WBASE}, v11")
    for b in range(1, NS):
        a(f"v_add_u32 v{11+b}, {b*STG}, v11")
    a(f"v_and_b32 v{T}, 15, v0")
    a(f"v_lshrrev_b32 v{T+1}, 4, v0")
    a(f"v_xor_b32 v{T+2}, v{T}, v{T+1}")
    a(f"v_and_b32 v{T+2}, 7, v{T+2}")
    a(f"v_lshlrev_b32 v8, 7, v{T}")
    a(f"v_lshl_add_u32 v8, v{T+2}, 4, v8")
    a("v_xor_b32 v9, 64, v8")
    a(f"v_and_b32 v{T+3}, 3, v0")
    a(f"v_xor_b32 v{T+2}, v{T+3}, v{T+1}")
    a(f"v_lshlrev_b32 v{T+12}, 7, v{T+3}")
    a(f"v_lshl_add_u32 v{T+12}, v{T+2}, 4, v{T+12}")
    a(f"v_add_u32 v{T+12}, 4096, v{T+12}")
    a(f"v_xor_b32 v{T+13}, 64, v{T+12}")
    a("s_and_b32 s23, s20, 3")
    a("s_mul_i32 s23, s23, 36")
    a(f"v_add_u32 v{T}, s23, v0")
    a(f"v_mul_u32_u24 v{T+1}, 3641, v{T}")
    a(f"v_lshrrev_b32 v{T+1}, 16, v{T+1}")
    a(f"v_mul_u32_u24 v{T+2}, 18, v{T+1}")
    a(f"v_sub_u32 v{T+2}, v{T}, v{T+2}")
    a("s_lshl_b32 s23, s22, 3")
    a(f"v_add_u32 v{T+1}, s23, v{T+1}")
    a(f"v_mul_lo_u32 v{T+1}, v{T+1}, s26")
    a(f"v_lshl_add_u32 v{T+1}, v{T+2}, 4, v{T+1}")
    a("s_mul_i32 s24, s21, 288")
    a(f"v_add_u32 v14, s24, v{T+1}")
    def wpf(stage):
        a(f"s_mov_b32 s49, {stage*64*9216}")
        a("s_mov_b32 exec_hi, 0xf")
        a.vm(f"buffer_load_dwordx4 v[{T+4}:{T+7}], v14, s[12:15], s49 offen", "PF")
        a("s_mov_b32 exec_hi, -1")
    a("s_bitcmp1_b32 0x63, s20")
    a("s_cbranch_scc1 KM_nopf0")
    for st in (2, 3): wpf(st)
    a.label("KM_nopf0")
    a("s_mul_i32 s49, s21, 18")
    a(f"v_add_u32 v{T+9}, s49, v0")
    a(f"v_lshlrev_b32 v{T+9}, 4, v{T+9}")
    a(f"v_lshl_add_u32 v10, s20, 10, v1")
    a("s_mul_i32 s48, s2, 20736")
    a("s_add_u32 s46, s48, 20736")
    phase0()
    a("s_waitcnt lgkmcnt(0)")
    stamp(7)
    a("s_barrier")
    stamp(8)
    a(f"v_mov_b32 v{T}, {PTL_OFF + 2880}")
    a(f"ds_read_b32 v{T+1}, v{T}")
    a("s_waitcnt lgkmcnt(0)")
    a(f"v_readfirstlane_b32 s3, v{T+1}")
    a("s_nop 3")
    a("s_cmp_lg_u32 s20, 7")
    a("s_cbranch_scc1 KM_p0wait")
    setflag(1)
    a("s_mov_b32 exec_hi, 0")
    a(f"v_lshlrev_b32 v{T}, 8, v0")
    a("s_lshl_b32 s49, s22, 13")
    a(f"s_add_u32 s49, s49, {FLAG_OFF}")
    poll("KM_poll0", T, "s49", 1, T+1)
    a("s_mov_b64 exec, -1")
    a.label("KM_p0wait")
    a("s_bitcmp0_b32 0x63, s20")
    a("s_cbranch_scc1 KM_p0b")
    a.vmq = []
    dma01()
    for st in (2, 3): wpf(st)
    a("s_branch KM_p0c")
    a.label("KM_p0b")
    a.label("KM_p0c")
    if stamps: a("s_memrealtime s[78:79]")
    a("s_mul_i32 s48, s2, 20736")
    a.wait_all()
    a("s_barrier")
    for ks0 in range(2):
        for i in range(2): xload(ks0, i)
    stamp(1)
    TOT = 18*NF
    for f in range(PD): fread(f)
    pend = []
    pf_left = 3 if pf_wd else 0
    for f in range(TOT):
        ks, n = divmod(f, NF)
        fill = []
        if (f+PD) % (2*NF) == 0 and f+PD < TOT:
            s1 = (f+PD)//(2*NF)
            a.wait(vm=f"D{s1}")
            a("s_barrier")
            if s1+1 <= 8:
                pend = [(s1+1, q) for q in range(6)]
        if f+PD < TOT:
            fill.append(lambda: fread(f+PD))
        if n == 0 and ks+2 < 18:
            for i in range(2):
                fill.append(lambda i=i: xload(ks+2, i))
        elif pend and n % 2 == 1:
            st, q = pend.pop(0)
            fill.append(lambda st=st, q=q: dma(st, q))
        elif n == 14 and ks % 2 == 0 and ks//2 + 4 <= 8:
            fill.append(lambda: wpf(ks//2 + 4))
        elif pf_left and ks >= 4 and n == 10:
            k = 3 - pf_left; pf_left -= 1
            def pf(k=k):
                a(f"s_add_u32 s49, s48, {k*8192}")
                a.vm(f"buffer_load_dwordx4 v[{T+4}:{T+7}], v10, s[44:47], s49 offen", "PF")
            fill.append(pf)
        if n == 0:
            a.wait(vm=f"X{ks}", lg=f"F{f}")
        else:
            a.wait(lg=f"F{f}")
        slot = ks % 3
        src = rng('a', FR + (f % NRING)*4)
        for i in range(2):
            r = acc_reg(i, n//2, n % 2) if n < 18 else sacc_reg(i, n-18)
            xsrc = rng('a', XR + slot*8 + i*4)
            c = "0" if ks == 0 else rng('v', r)
            a(f"v_mfma_f32_16x16x32_bf16 {rng('v', r)}, {src}, {xsrc}, {c}")
            if fill: fill.pop(0)()
        while fill: fill.pop(0)()
    stamp(2)
    a("s_barrier")
    a(f"v_and_b32 v{T+1}, 15, v0")
    a(f"v_lshrrev_b32 v{T+2}, 4, v0")
    a(f"v_mul_u32_u24 v{T+1}, {SL_STR}, v{T+1}")
    a(f"v_lshl_add_u32 v{T+1}, v{T+2}, 4, v{T+1}")
    a(f"s_mul_i32 s49, s20, {32*SL_STR}")
    a(f"s_add_u32 s49, s49, {SL_OFF}")
    a(f"v_add_u32 v{T+1}, s49, v{T+1}")
    for i in range(2):
        for u in range(3):
            a(f"ds_write_b128 v{T+1}, {rng('v', sacc_reg(i,u))} offset:{i*16*SL_STR + u*64}")
    a("s_waitcnt lgkmcnt(0)")
    a("s_barrier")
    a("s_lshl_b32 s32, s22, 3")
    a("s_add_u32 s32, s32, s20")
    a("s_mul_i32 s32, s32, 180")
    a("s_mul_i32 s33, s21, 9")
    a("s_lshr_b32 s33, s33, 1")
    a("s_add_u32 s32, s32, s33")
    a("s_lshl_b32 s32, s32, 11")
    a(f"s_add_u32 s32, s32, {HF_OFF}")
    a("s_mov_b32 s60, 0xbfb8aa3b")
    a("s_mov_b32 s61, 0xbfb8aa3b")
    a("s_mov_b32 s62, 1.0")
    a("s_mov_b32 s63, 1.0")
    a("s_and_b32 s33, s21, 1")

    def act(i, j, dst):
        g = acc_reg(i, j, 0); u = acc_reg(i, j, 1)
        for r in range(4): a(f"v_cvt_pk_bf16_f32 v{g+r}, 0, v{g+r}")
        for r in (0, 2): a(f"v_pk_mul_f32 v[{T+r}:{T+r+1}], v[{g+r}:{g+r+1}], s[60:61]")
        for r in range(4): a(f"v_exp_f32 v{T+r}, v{T+r}")
        for r in range(4): a(f"v_cvt_pk_bf16_f32 v{u+r}, 0, v{u+r}")
        for r in (0, 2): a(f"v_pk_add_f32 v[{T+r}:{T+r+1}], v[{T+r}:{T+r+1}], s[62:63]")
        for r in range(4): a(f"v_rcp_f32 v{T+r}, v{T+r}")
        a("s_nop 0")
        for r in (0, 2): a(f"v_pk_mul_f32 v[{T+r}:{T+r+1}], v[{g+r}:{g+r+1}], v[{T+r}:{T+r+1}]")
        for r in range(4): a(f"v_cvt_pk_bf16_f32 v{T+r}, 0, v{T+r}")
        for r in (0, 2): a(f"v_pk_mul_f32 v[{T+r}:{T+r+1}], v[{T+r}:{T+r+1}], v[{u+r}:{u+r+1}]")
        a(f"v_cvt_pk_bf16_f32 v{dst}, v{T}, v{T+1}")
        a(f"v_cvt_pk_bf16_f32 v{dst+1}, v{T+2}, v{T+3}")
    def group(gi):
        lo, le = a.newlabel("K1_g_odd"), a.newlabel("K1_g_end")
        a(f"s_add_u32 s35, s32, {gi*2048}")
        a("s_cmp_eq_u32 s33, 1")
        a(f"s_cbranch_scc1 {lo}")
        for odd in (False, True):
            if odd: a.label(lo)
            if not odd: js = [(0,1), (2,3), (4,5), (6,7), (8,)][gi]
            else: js = [(0,), (1,2), (3,4), (5,6), (7,8)][gi]
            for i in range(2):
                d0 = acc_reg(i, js[0], 0)
                if len(js) == 2:
                    act(i, js[0], d0); act(i, js[1], d0+2)
                    a(f"buffer_store_dwordx4 v[{d0}:{d0+3}], v1, s[16:19], s35 offen offset:{i*1024} {HS}")
                else:
                    act(i, js[0], d0)
                    a(f"buffer_store_dwordx2 v[{d0}:{d0+1}], v1, s[16:19], s35 offen offset:{i*1024 + (8 if odd else 0)} {HS}")
            if not odd: a(f"s_branch {le}")
        a.label(le)
    S = SAC
    a("s_cmp_gt_u32 s20, 4")
    a("s_cbranch_scc1 K1_noscan")
    a(f"v_lshl_add_u32 v{T}, s20, 6, v0")
    a(f"v_cmp_gt_u32 vcc, 288, v{T}")
    a("s_and_saveexec_b64 s[50:51], vcc")
    a(f"v_mul_u32_u24 v{T+1}, 3641, v{T}")
    a(f"v_lshrrev_b32 v{T+1}, 16, v{T+1}")
    a(f"v_mul_u32_u24 v{T+2}, 18, v{T+1}")
    a(f"v_sub_u32 v{T+2}, v{T}, v{T+2}")
    a(f"v_mul_u32_u24 v{T+3}, 160, v{T+2}")
    a(f"v_add_u32 v{T+3}, {PTL_OFF}, v{T+3}")
    a(f"ds_read_b64 v[{T+4}:{T+5}], v{T+3}")
    a(f"v_mul_u32_u24 v{T+6}, {16*SL_STR}, v{T+1}")
    a(f"v_lshl_add_u32 v{T+6}, v{T+2}, 2, v{T+6}")
    a(f"v_add_u32 v{T+6}, {SL_OFF}, v{T+6}")
    a(f"v_mov_b32 v{S+16}, 0")
    a(f"v_mov_b32 v{S+17}, 0")
    for hb in range(2):
        for t in range(8):
            tt = hb*8 + t
            a(f"ds_read_b32 v{S+2*t}, v{T+6} offset:{tt*SL_STR}")
            if t == 6: a("s_waitcnt lgkmcnt(8)")
            a(f"ds_read_b32 v{S+2*t+1}, v{T+6} offset:{tt*SL_STR + 72}")
        a("s_waitcnt lgkmcnt(0)")
        for t in range(8):
            r = S+2*t
            pr = (S+16) if t == 0 else (S+2*t-2)
            if hb == 0 and t == 0: continue
            a(f"v_fma_f32 v{r}, -v{T+5}, v{pr+1}, v{r}")
            a(f"v_fmac_f32 v{r+1}, v{T+5}, v{pr}")
            a(f"v_fmac_f32 v{r}, v{T+4}, v{pr}")
            a(f"v_fmac_f32 v{r+1}, v{T+4}, v{pr+1}")
        for t in range(8):
            tt = hb*8 + t
            if tt == 0: continue
            a(f"ds_write_b32 v{T+6}, v{S+2*t} offset:{tt*SL_STR}")
            a(f"ds_write_b32 v{T+6}, v{S+2*t+1} offset:{tt*SL_STR + 72}")
        if hb == 0:
            a(f"v_mov_b32 v{S+16}, v{S+14}")
            a(f"v_mov_b32 v{S+17}, v{S+15}")
            a("s_waitcnt lgkmcnt(0)")
    a(f"v_lshlrev_b32 v{T+7}, 3, v{T}")
    a(f"v_add_u32 v{T+7}, {EG_OFF}, v{T+7}")
    a(f"ds_write_b64 v{T+7}, v[{S+14}:{S+15}]")
    a("s_mov_b64 exec, s[50:51]")
    a.label("K1_noscan")
    a("s_cmp_eq_u32 s20, 0")
    a("s_cbranch_scc1 KM_skipg0")
    group(0)
    a.label("KM_skipg0")
    a("s_waitcnt lgkmcnt(0)")
    a("s_barrier")
    a("s_cmp_lg_u32 s20, 0")
    a("s_cbranch_scc1 K1_nopfx")
    a("v_cmp_gt_u32 vcc, 18, v0")
    a("s_and_saveexec_b64 s[50:51], vcc")
    a(f"v_mul_u32_u24 v{T+3}, 160, v0")
    a(f"v_add_u32 v{T+3}, {PTL_OFF}, v{T+3}")
    a(f"ds_read_b128 v[{T+4}:{T+7}], v{T+3} offset:16")
    a(f"v_lshlrev_b32 v{T+8}, 3, v0")
    a(f"v_add_u32 v{T+8}, {EG_OFF}, v{T+8}")
    def cfma(d, m, x, e):
        if d != e:
            a(f"v_fma_f32 v{d}, v{m}, v{x}, v{e}")
            a(f"v_fma_f32 v{d+1}, v{m}, v{x+1}, v{e+1}")
        else:
            a(f"v_fmac_f32 v{d}, v{m}, v{x}")
            a(f"v_fmac_f32 v{d+1}, v{m}, v{x+1}")
        a(f"v_fma_f32 v{d}, -v{m+1}, v{x+1}, v{d}")
        a(f"v_fmac_f32 v{d+1}, v{m+1}, v{x}")
    for sg in range(8):
        a(f"ds_read_b64 v[{S+2*sg}:{S+2*sg+1}], v{T+8} offset:{sg*144}")
    a("s_waitcnt lgkmcnt(0)")
    for sg in range(1, 8):
        cfma(S+2*sg, T+4, S+2*sg-2, S+2*sg)
    a(f"v_mov_b32 v{S+16}, v{S+14}")
    a(f"v_mov_b32 v{S+17}, v{S+15}")
    for sg in range(8):
        a(f"ds_read_b64 v[{S+2*sg}:{S+2*sg+1}], v{T+8} offset:{(8+sg)*144}")
    a("s_waitcnt lgkmcnt(0)")
    cfma(S, T+4, S+16, S)
    for sg in range(1, 8):
        cfma(S+2*sg, T+4, S+2*sg-2, S+2*sg)
    a(f"s_mul_i32 s52, s22, {576*16}")
    a(f"s_add_u32 s52, s52, {AGG_OFF}")
    a(f"v_mov_b32 v{S+16}, v{S+14}")
    a(f"v_mov_b32 v{S+17}, s3")
    a(f"v_mov_b32 v{S+18}, v{S+15}")
    a(f"v_mov_b32 v{S+19}, s3")
    a(f"buffer_store_dwordx4 v[{S+16}:{S+19}], v{T+9}, s[16:19], s52 offen sc1")
    setflag(2)
    group(0)
    a.label("K1_nopfx")
    group(1)
    group(2)
    a("s_cmp_lg_u32 s20, 0")
    a("s_cbranch_scc1 K1_nopfx2")
    a(f"v_mov_b32 v{S+16}, 0")
    a(f"v_mov_b32 v{S+17}, 0")
    a("s_cmp_eq_u32 s22, 0")
    a("s_cbranch_scc1 K1_nogather")
    a("v_cmp_gt_u32 vcc, 18, v0")
    a("s_and_saveexec_b64 s[50:51], vcc")
    G = ACC
    a.label("K1_poll")
    a(f"s_mov_b32 s52, {AGG_OFF}")
    for m in range(7):
        a(f"v_mov_b32 v{G+4*m+1}, s3")
        a(f"v_mov_b32 v{G+4*m+3}, s3")
    for m in range(7):
        a(f"s_cmp_le_u32 s22, {m}")
        a("s_cbranch_scc1 K1_gld")
        a(f"buffer_load_dwordx4 v[{G+4*m}:{G+4*m+3}], v{T+9}, s[16:19], s52 offen sc1")
        a(f"s_add_u32 s52, s52, {576*16}")
    a.label("K1_gld")
    a("s_waitcnt vmcnt(0)")
    a(f"v_mov_b32 v{T+10}, 0")
    for m in range(7):
        a(f"v_xor_b32 v{T+11}, s3, v{G+4*m+1}")
        a(f"v_or_b32 v{T+10}, v{T+10}, v{T+11}")
        a(f"v_xor_b32 v{T+11}, s3, v{G+4*m+3}")
        a(f"v_or_b32 v{T+10}, v{T+10}, v{T+11}")
    a(f"v_cmp_ne_u32 vcc, 0, v{T+10}")
    a("s_nop 4")
    a("s_cbranch_vccz K1_polled")
    a("s_sleep 2")
    a("s_branch K1_poll")
    a.label("K1_polled")
    for m in range(7):
        a(f"v_mov_b32 v{S+2*m}, v{G+4*m}")
        a(f"v_mov_b32 v{S+2*m+1}, v{G+4*m+2}")
    for m in range(7):
        a(f"s_cmp_le_u32 s22, {m}")
        a("s_cbranch_scc1 K1_gdn")
        cfma(S+2*m, T+6, S+16, S+2*m)
        a(f"v_mov_b32 v{S+16}, v{S+2*m}")
        a(f"v_mov_b32 v{S+17}, v{S+2*m+1}")
    a.label("K1_gdn")
    a("s_mov_b64 exec, s[50:51]")
    a.label("K1_nogather")
    a("v_cmp_gt_u32 vcc, 18, v0")
    a("s_and_saveexec_b64 s[50:51], vcc")
    for hb in range(2):
        for sg in range(8):
            a(f"ds_read_b64 v[{S+2*sg}:{S+2*sg+1}], v{T+8} offset:{(hb*8+sg)*144}")
        a("s_waitcnt lgkmcnt(0)")
        for sg in range(8):
            prev = (S+16) if sg == 0 else (S+2*sg-2)
            a(f"ds_write_b64 v{T+8}, v[{prev}:{prev+1}] offset:{(hb*8+sg)*144}")
            cfma(S+2*sg, T+4, prev, S+2*sg)
        a(f"v_mov_b32 v{S+16}, v{S+14}")
        a(f"v_mov_b32 v{S+17}, v{S+15}")
        a("s_waitcnt lgkmcnt(0)")
    a("s_mov_b64 exec, s[50:51]")
    a.label("K1_nopfx2")
    group(3)
    group(4)
    if split:
        a("s_cmp_lg_u32 s20, 1")
        a("s_cbranch_scc1 KM_nochk")
        a("s_mov_b64 exec, 1")
        a(f"v_mov_b32 v{T+4}, 0")
        a("s_lshl_b32 s49, s2, 2")
        a(f"s_add_u32 s49, s49, {FLAG2_OFF}")
        a(f"buffer_store_dword v{T+4}, v{T+4}, s[16:19], s49 offen")
        a("s_mov_b64 exec, -1")
        a("s_branch KM_nochk")
    a.label("KM_nochk")
    a("s_lshr_b32 s50, s20, 1")
    a("s_and_b32 s51, s20, 1")
    a("s_lshl_b32 s53, s51, 1")
    a("s_sub_u32 s53, s53, s33")
    a("s_lshl_b32 s52, s50, 6")
    a(f"v_add_u32 v{T}, s52, v0")
    a(f"v_mul_u32_u24 v{T+1}, {SL_STR}, v{T}")
    a("s_lshl_b32 s54, s53, 3")
    a(f"s_add_u32 s54, s54, {SL_OFF}")
    a(f"v_add_u32 v{T+1}, s54, v{T+1}")
    a(f"v_and_b32 v{T+2}, 15, v0")
    a(f"v_lshlrev_b32 v{T+2}, 3, v{T+2}")
    a("s_mul_i32 s54, s53, 320")
    a(f"s_add_u32 s54, s54, {PTL_OFF}")
    a(f"v_add_u32 v{T+2}, s54, v{T+2}")
    a(f"v_mov_b32 v{T+4}, s54")
    a(f"v_lshrrev_b32 v{T+3}, 4, v{T}")
    a(f"v_mul_u32_u24 v{T+3}, 144, v{T+3}")
    a("s_lshl_b32 s55, s53, 4")
    a(f"s_add_u32 s55, s55, {EG_OFF}")
    a(f"v_add_u32 v{T+3}, s55, v{T+3}")
    a(f"v_lshrrev_b32 v{T+5}, 5, v0")
    a(f"v_mul_u32_u24 v{T+5}, {180*2048}, v{T+5}")
    a(f"v_bfe_u32 v{T+6}, v0, 4, 1")
    a(f"v_lshl_add_u32 v{T+5}, v{T+6}, 10, v{T+5}")
    a(f"v_and_b32 v{T+6}, 15, v0")
    a(f"v_lshl_add_u32 v{T+5}, v{T+6}, 4, v{T+5}")
    a("s_lshl_b32 s56, s22, 3")
    a("s_lshl_b32 s57, s50, 1")
    a("s_add_u32 s56, s56, s57")
    a("s_mul_i32 s56, s56, 180")
    a("s_add_u32 s56, s56, 144")
    a("s_lshl_b32 s56, s56, 11")
    a(f"s_add_u32 s56, s56, {HF_OFF}")
    a("s_mul_i32 s55, s21, 9")
    a("s_add_u32 s55, s55, s53")
    a("s_lshr_b32 s55, s55, 1")
    def Rb(n): return ACC + 16*n
    for n in range(6):
        R = Rb(n); it, h = divmod(n, 2)
        a(f"ds_read_b64 v[{R}:{R+1}], v{T+1} offset:{32*it+8*h}")
        a(f"ds_read_b64 v[{R+2}:{R+3}], v{T+1} offset:{32*it+8*h+72}")
        a(f"ds_read_b64 v[{R+4}:{R+5}], v{T+2} offset:{1280*it+320*h+32}")
        a(f"ds_read_b64 v[{R+6}:{R+7}], v{T+2} offset:{1280*it+320*h+192}")
        a(f"ds_read_b64 v[{R+12}:{R+13}], v{T+4} offset:{1280*it+320*h+8}")
        a(f"ds_read_b64 v[{R+14}:{R+15}], v{T+4} offset:{1280*it+320*h+168}")
        if n % 2 == 1: a("s_waitcnt lgkmcnt(0)")
    a("s_waitcnt vmcnt(0)")
    a("s_barrier")
    a("s_cmp_lg_u32 s20, 7")
    a("s_cbranch_scc1 KM_nf3")
    setflag(3, T+7)
    a.label("KM_nf3")
    for n in range(6):
        R = Rb(n); it, h = divmod(n, 2)
        a(f"ds_read_b128 v[{R+8}:{R+11}], v{T+3} offset:{64*it+16*h}")
    for it in range(3):
        if it == 2:
            a("s_cmp_eq_u32 s51, 1")
            a("s_cbranch_scc1 K1_fin_end")
        a(f"s_add_u32 s57, s55, {2*it}")
        a("s_lshr_b32 s58, s57, 2")
        a("s_lshl_b32 s58, s58, 11")
        a("s_add_u32 s58, s58, s56")
        a("s_and_b32 s59, s57, 3")
        a("s_lshl_b32 s59, s59, 8")
        a("s_add_u32 s58, s58, s59")
        a(f"s_waitcnt lgkmcnt({4-2*it})")
        D = Rb(2*it)
        for h in range(2):
            R = Rb(2*it+h)
            for e in range(2):
                gr, gi = R+e, R+2+e
                pr, pi = R+4+2*e, R+5+2*e
                fr, fi = R+8+2*e, R+9+2*e
                cr, ci = R+12+2*e, R+13+2*e
                a(f"v_fmac_f32 v{gr}, v{pr}, v{fr}")
                a(f"v_fmac_f32 v{gi}, v{pr}, v{fi}")
                a(f"v_fma_f32 v{gr}, -v{pi}, v{fi}, v{gr}")
                a(f"v_fmac_f32 v{gi}, v{pi}, v{fr}")
                a(f"v_mul_f32 v{pr}, v{cr}, v{gr}")
                a(f"v_mul_f32 v{pi}, v{cr}, v{gi}")
                a(f"v_fma_f32 v{pr}, -v{ci}, v{gi}, v{pr}")
                a(f"v_fmac_f32 v{pi}, v{ci}, v{gr}")
            a(f"v_cvt_pk_bf16_f32 v{D+2*h}, v{R+4}, v{R+5}")
            a(f"v_cvt_pk_bf16_f32 v{D+2*h+1}, v{R+6}, v{R+7}")
        if it == 0:
            l1, l2 = a.newlabel("KF_h"), a.newlabel("KF_e")
            a("s_cmp_lt_i32 s53, 0")
            a(f"s_cbranch_scc1 {l1}")
            a(f"buffer_store_dwordx4 v[{D}:{D+3}], v{T+5}, s[16:19], s58 offen {HS}")
            a(f"s_branch {l2}")
            a.label(l1)
            a(f"buffer_store_dwordx2 v[{D+2}:{D+3}], v{T+5}, s[16:19], s58 offen offset:8 {HS}")
            a.label(l2)
        elif it == 2:
            l1, l2 = a.newlabel("KF_h"), a.newlabel("KF_e")
            a("s_cmp_eq_u32 s33, 0")
            a(f"s_cbranch_scc1 {l1}")
            a(f"buffer_store_dwordx4 v[{D}:{D+3}], v{T+5}, s[16:19], s58 offen {HS}")
            a(f"s_branch {l2}")
            a.label(l1)
            a(f"buffer_store_dwordx2 v[{D}:{D+1}], v{T+5}, s[16:19], s58 offen {HS}")
            a.label(l2)
        else:
            a(f"buffer_store_dwordx4 v[{D}:{D+3}], v{T+5}, s[16:19], s58 offen {HS}")
    a.label("K1_fin_end")
    stamp(3)
    if split:
        if stamps:
            a("s_waitcnt vmcnt(0)")
            stamp(4)
            a("s_waitcnt lgkmcnt(0)")
            for n in range(1, 5):
                a(f"s_sub_u32 s{44+n}, s{82+2*n}, s82")
                a(f"v_mov_b32 v{16+n}, s{44+n}")
            a("v_mov_b32 v16, s82")
            a("s_lshl_b32 s36, s2, 3")
            a("s_add_u32 s36, s36, s20")
            a("s_lshl_b32 s36, s36, 6")
            a("s_add_u32 s36, s36, 0xF000000")
            a("v_mov_b32 v28, 0")
            a("buffer_store_dwordx4 v[16:19], v28, s[16:19], s36 offen")
            a("buffer_store_dword v20, v28, s[16:19], s36 offen offset:16")
            a("s_waitcnt vmcnt(0)")
        a.label("K1_done")
        a("s_endpgm")
        return a.text(), kernel_desc(name, NARCH+NACC, NARCH)
    a("s_waitcnt lgkmcnt(0)")
    if stamps:
        a("s_waitcnt lgkmcnt(0)")
        a("s_sub_u32 s49, s96, s82")
        a("s_sub_u32 s50, s98, s82")
        a("s_sub_u32 s51, s78, s82")
        a("s_sub_u32 s52, s84, s82")
        a(f"v_mov_b32 v{T}, s49")
        a(f"v_mov_b32 v{T+1}, s50")
        a(f"v_mov_b32 v{T+2}, s51")
        a(f"v_mov_b32 v{T+3}, s52")
        a("s_lshl_b32 s49, s2, 3")
        a("s_add_u32 s49, s49, s20")
        a("s_lshl_b32 s49, s49, 4")
        a("s_add_u32 s49, s49, 0xF100000")
        a(f"v_mov_b32 v{T+4}, 0")
        a(f"buffer_store_dwordx4 v[{T}:{T+3}], v{T+4}, s[16:19], s49 offen")
    a("s_barrier")
    a("s_cmp_lt_u32 s20, 4")
    a("s_cbranch_scc1 KM_p2")
    a("s_waitcnt vmcnt(0)")
    a("s_barrier")
    a("s_cmp_lg_u32 s20, 4")
    a("s_cbranch_scc1 KM_exit")
    setflag(4)
    a.label("KM_exit")
    a("s_endpgm")
    a.label("KM_p2")
    a("s_mov_b32 s4, s10")
    a("s_mov_b32 s5, s11")
    a.vmq = []; a.lgq = []
    k2.setup(a)
    a("s_cmp_lg_u32 s25, 3")
    a("s_cbranch_scc1 KM_nocst")
    a("v_lshlrev_b32 v88, 8, v0")
    for qq in range(4):
        a(f"s_mov_b32 s49, {FLAG_OFF + qq*16384}")
        poll(f"KM_pollc{qq}", 88, "s49", 2, 89)
    a.label("KM_nocst")
    for st in range(4):
        for q in range(7): k2.dma(a, st, q)
    a("v_lshlrev_b32 v88, 8, v0")
    a("s_lshr_b32 s44, s22, 1")
    a("s_lshl_b32 s44, s44, 13")
    a(f"s_add_u32 s44, s44, {FLAG_OFF}")
    a("s_cmp_eq_u32 s25, 3")
    a("s_cbranch_scc1 KM_p2s")
    a("s_mov_b32 exec_hi, 0")
    poll("KM_poll2", 88, "s44", 3, 89)
    a("s_mov_b32 exec_hi, -1")
    a("s_branch KM_p2e")
    a.label("KM_p2s")
    a("s_waitcnt vmcnt(0)")
    a("s_barrier")
    a("s_mov_b32 exec_hi, 0")
    poll("KM_poll2s", 88, "s44", 4, 89)
    a("s_mov_b32 exec_hi, -1")
    a.label("KM_p2e")
    a.vmq = []
    stamp(4)
    nost = lambda n: None
    k2.tail_pre(a)
    saved = list(a.vmq)
    a("s_cmp_eq_u32 s25, 3")
    a("s_cbranch_scc1 K2_ssm")
    k2.body(a, 48, nost, hflag="sc1", pre_dma_done=True)
    a("s_branch K2_tail")
    a.label("K2_ssm")
    a.vmq = list(saved); a.lgq = []
    k2.body(a, 36, nost, hflag="sc1", pre_dma_done=True)
    a.label("K2_tail")
    stamp(5)
    a("s_nop 7")
    k2.tail(a, nost, mega=(setflag, poll))
    if stamps:
        a("s_waitcnt vmcnt(0)")
        stamp(6)
        a("s_waitcnt lgkmcnt(0)")
        for n in range(1, 7):
            a(f"s_sub_u32 s{44+n}, s{82+2*n}, s82")
            a(f"v_mov_b32 v{16+n}, s{44+n}")
        a("v_mov_b32 v16, s82")
        a("s_lshl_b32 s36, s2, 2")
        a("s_add_u32 s36, s36, s20")
        a("s_lshl_b32 s36, s36, 5")
        a("s_add_u32 s36, s36, 0xF000000")
        a("v_mov_b32 v28, 0")
        a("buffer_store_dwordx4 v[16:19], v28, s[16:19], s36 offen")
        a("buffer_store_dwordx4 v[20:23], v28, s[16:19], s36 offen offset:16")
        a("s_waitcnt vmcnt(0)")
    a.label("K1_done")
    a("s_endpgm")
    return a.text(), kernel_desc(name, NARCH+NACC, NARCH)

if __name__ == "__main__":
    body, desc = gen_km(stamps=("stamps" in sys.argv), wbl2=("wbl2" in sys.argv))
    hdr_src = open("parallel_sum__ssm_conv_s5__swiglu_ffn__prompt.s.ref").read().split("\n")
    head = []
    for l in hdr_src:
        if "@launch" in l: continue
        if not l.startswith(";"): break
        head.append(l)
    head.append(f"; @launch grid=(256,1,1) block=(512,1,1) lds={KM_LDS}")
    out = "\n".join(head) + "\n.amdgcn_target \"amdgcn-amd-amdhsa--gfx950\"\n" + body + desc
    open(sys.argv[1], "w").write(out)
```
